```python
import torch

def _softmax(x, axis=-1):
    return torch.softmax(x, dim=axis)
def _gelu(x):
    return torch.nn.functional.gelu(x, approximate="tanh")
def _silu(x):
    return torch.nn.functional.silu(x)
def _sigmoid(x):
    return torch.sigmoid(x)
def _layernorm(x, axis=-1, eps=1e-5):
    m = x.mean(dim=axis, keepdim=True)
    v = x.var(dim=axis, keepdim=True, unbiased=False)
    return (x - m) / torch.sqrt(v + eps)
def _scatter_add(tgt, idx, src, axis=0):
    return tgt.clone().index_add_(axis, idx, src)
def _segment_sum(src, seg, n):
    out = torch.zeros((n,) + src.shape[1:], dtype=src.dtype)
    return out.index_add_(0, seg, src)
def _pad(x, pw):
    flat = tuple(v for pair in reversed(pw) for v in pair)
    return torch.nn.functional.pad(x, flat)

kernel_name = 'standalone__modern_conv_block_slak__vision'

def setup_inputs():

    _w = (lambda a: (lambda t: t.to(torch.bfloat16) if t.is_floating_point() else t)(torch.as_tensor(a)))
    H = W = 256
    C = 384
    K = 1
    return {
        "x": _w((lambda *s: torch.randn(*s, dtype=torch.bfloat16) * 0.05)(1, H, W, C)),
        "dw": _w((lambda *s: torch.randn(*s, dtype=torch.bfloat16) * 0.05)(K, K, C)),
        "w1": _w((lambda *s: torch.randn(*s, dtype=torch.bfloat16) * 0.05)(C, 4 * C)),
        "w2": _w((lambda *s: torch.randn(*s, dtype=torch.bfloat16) * 0.05)(4 * C, C)),
        "grn_g": _w((lambda *s: torch.randn(*s, dtype=torch.bfloat16) * 0.05)(4 * C)),
        "grn_b": _w((lambda *s: torch.randn(*s, dtype=torch.bfloat16) * 0.05)(4 * C)),
    }

def reference(x, dw, w1, w2, grn_g, grn_b):
    B, H, W, C = x.shape
    K = dw.shape[0]
    pad = K // 2
    xp = _pad(x, ((0,0),(pad,pad),(pad,pad),(0,0)))
    out = torch.zeros_like(x)
    for i in range(K):
        for j in range(K):
            out = out + xp[:, i:i+H, j:j+W, :] * dw[i, j][None, None, None, :]
    h = _layernorm(out, axis=-1)
    h = _gelu(h @ w1)
    gx = torch.sqrt((h * h).sum(axis=(1, 2), keepdims=True) + 1e-6)
    nx = gx / (gx.mean(axis=-1, keepdims=True) + 1e-6)
    h = grn_g[None, None, None, :] * (h * nx) + grn_b[None, None, None, :] + h
    return x + h @ w2
```

```python
import re

def regs_of(tok):
    tok = tok.strip()
    tok = tok.lstrip('-')
    if tok.startswith('|'): tok = tok.strip('|')
    m = re.fullmatch(r'abs\((.*)\)', tok)
    if m: tok = m.group(1)
    m = re.fullmatch(r'([vas])\[(\d+):(\d+)\]', tok)
    if m: return {(m.group(1), i) for i in range(int(m.group(2)), int(m.group(3))+1)}
    m = re.fullmatch(r'([vas])(\d+)', tok)
    if m: return {(m.group(1), int(m.group(2)))}
    if tok == 'vcc': return {('s', 'vcc')}
    if tok == 'm0': return {('s', 'm0')}
    if tok == 'exec': return {('s', 'exec')}
    return set()

TRANS = ('v_exp_', 'v_log_', 'v_rcp_', 'v_rsq_', 'v_sqrt_', 'v_sin_', 'v_cos_')

class I:
    def __init__(self, text):
        self.text = text
        t = text.split(';')[0].strip()
        self.op = t.split()[0] if t else ''
        rest = t[len(self.op):].strip()
        ops = [o.strip() for o in rest.split(',')] if rest else []
        clean = []
        for o in ops:
            clean.append(o.split()[0] if o else o)
        self.ops = clean
        op = self.op
        self.is_label = t.endswith(':') or op.startswith('.') or op == ''
        self.mfma = op.startswith('v_mfma')
        self.valu = op.startswith('v_') and not self.mfma
        self.trans = op.startswith(TRANS)
        self.ds = op.startswith('ds_')
        self.vmem = op.startswith(('buffer_', 'global_'))
        self.salu = op.startswith('s_')
        self.lds_dma = self.vmem and (' lds' in t or 'load_lds' in op)
        self.w = set(); self.r = set()
        R = [regs_of(o) for o in clean]
        if self.is_label: return
        if self.mfma:
            self.w = R[0]; self.ra = R[1]; self.rb = R[2]; self.rc = R[3]; self.r = R[1] | R[2] | R[3]
            self.passes = 8 if '32x32' in op else 4
        elif self.valu:
            if op.startswith('v_permlane') or op.startswith('v_swap'):
                self.w = R[0] | R[1]; self.r = R[0] | R[1]
            elif op.startswith('v_cmp'):
                self.w = R[0]; self.r = set().union(*R[1:])
            else:
                self.w = R[0]; self.r = set().union(*R[1:]) if len(R) > 1 else set()
                if op.startswith(('v_fmac', 'v_dot2c')) or 'UNUSED_PRESERVE' in t or '_dpp' in op or 'mixlo' in op or 'mixhi' in op: self.r |= R[0]
                if op.startswith('v_cndmask') and len(R) == 3: self.r |= {('s', 'vcc')}
        elif self.ds:
            if op.startswith('ds_read'): self.w = R[0]; self.r = set().union(*R[1:])
            else: self.r = set().union(*R)
        elif self.vmem:
            if self.lds_dma: self.r = set().union(*R) | {('s', 'm0')}
            elif '_load' in op: self.w = R[0]; self.r = set().union(*R[1:])
            else:
                self.r = set().union(*R)
                self.data = R[0] if op.startswith('buffer_') else R[1]
                self.wide = op.endswith(('x3', 'x4'))
        elif self.salu:
            if op in ('s_nop', 's_waitcnt', 's_barrier', 's_setprio', 's_endpgm', 's_sleep') or op.startswith(('s_cbranch', 's_branch')): pass
            elif op.startswith('s_cmp'): self.r = set().union(*R)
            elif op.startswith('s_setpc'): self.r = R[0]
            else:
                self.w = R[0]; self.r = set().union(*R[1:]) if len(R) > 1 else set()
    def states(self):
        if self.is_label: return 0
        if self.op == 's_nop': return int(self.ops[0], 0) + 1
        return 1

def check_hazards(lines, name=''):
    ins = [I(l) for l in lines]
    ins = [i for i in ins if not i.is_label]
    errs = []
    for j, b in enumerate(ins):
        dist = 0
        for i in range(j-1, max(-1, j-24), -1):
            a = ins[i]
            need = 0; why = ''
            def req(n, w):
                nonlocal need, why
                if n > need: need, why = n, w
            vw = {x for x in a.w if x[0] in 'va'}
            sw = {x for x in a.w if x[0] == 's'}
            if a.valu:
                if b.mfma and vw & b.r: req(2, 'valu->mfma')
                if b.op.startswith('v_permlane') and vw & b.r: req(2, 'valu->permlane')
                if '_dpp' in b.op and vw & b.r: req(2, 'valu->dpp')
                if b.op.startswith(('v_readfirstlane', 'v_readlane')) and vw & b.r: req(1, 'valu->readlane')
                if a.trans and b.valu and not b.trans and vw & b.r: req(1, 'trans->valu')
                if a.trans and (b.ds or b.vmem) and vw & b.r: req(1, 'trans->mem')
                if ('sdwa' in a.op or 'op_sel' in a.text and 'mix' not in a.op and 'v_pk' not in a.op) and b.valu and vw & (b.r | b.w): req(1, 'sdwa->valu')
                if sw and b.vmem and sw & b.r: req(5, 'valu sgpr->vmem')
                if sw and b.valu and sw & b.r: req(2, 'valu sgpr->valu')
                if sw and b.salu and sw & b.r: req(1, 'valu sgpr->salu(pad)')
            if a.mfma:
                p = a.passes
                if b.mfma:
                    if a.w & (b.ra | b.rb): req({4: 8, 8: 12}[p], 'mfma->mfma AB')
                    if a.w & b.rc and not (a.w == b.rc and a.passes == b.passes): req({4: 6, 8: 10}[p], 'mfma->mfma C overlap')
                    if a.w & b.w and not (a.w == b.rc): req({4: 6, 8: 10}[p], 'mfma->mfma WAW(pad)')
                elif (b.valu or b.ds or b.vmem) and a.w & (b.r | b.w): req({4: 8, 8: 12}[p], 'mfma->valu/mem')
                if b.valu and a.rc & b.w: req({4: 3, 8: 7}[p], 'mfma C WAR')
            if a.vmem and getattr(a, 'wide', False) and a.data & b.w: req(2 if b.valu else 1, 'store data WAR')
            if a.salu and ('s', 'm0') in a.w and b.lds_dma: req(1, 'm0->dma')
            if need > dist:
                errs.append(f"{name}: hazard {why} need {need} have {dist}: [{a.text}] -> [{b.text}]")
            dist += a.states()
            if dist >= 20: break
    return errs
```

```python
import sys, struct, math
from asmlib import check_hazards, I

NAME = 'standalone__modern_conv_block_slak__vision'
def f2u(x): return struct.unpack('<I', struct.pack('<f', x))[0]
def hx(x): return '0x%08x' % (x & 0xffffffff)
def fl(x): return hx(f2u(x))

ALPHA = 2*math.sqrt(2/math.pi)*math.log2(math.e)
BETA = ALPHA*0.044715
CC = BETA**(1/3)
KAPPA = ALPHA/CC

X_BYTES = 65536*768
W_BYTES = 384*1536*2
H_OFF, H_BYTES = 0, 65536*1536*2
W1P_OFF = 192 << 20
W2P_OFF = 194 << 20
SUM_OFF = 196 << 20
NREP = 8
SUM_BYTES = NREP*6144

class Opt:
    x_nt = False
    x3_nt = False
    rot = True
    stamps = False
opt = Opt()

def srd(L, d, lo, hi, nbytes, off=0):
    if off:
        L.append(f"s_add_u32 s{d}, s{lo}, {hx(off)}")
        L.append(f"s_addc_u32 s{d+1}, s{hi}, 0")
        L.append(f"s_and_b32 s{d+1}, s{d+1}, 0xffff")
    else:
        L.append(f"s_mov_b32 s{d}, s{lo}")
        L.append(f"s_and_b32 s{d+1}, s{hi}, 0xffff")
    L.append(f"s_mov_b32 s{d+2}, {hx(nbytes)}")
    L.append(f"s_mov_b32 s{d+3}, 0x20000")

def vq(r, n=4): return f"v[{r}:{r+n-1}]"
def aq(r, n=4): return f"a[{r}:{r+n-1}]"

class Gaps:
    def __init__(self, mf):
        self.mf = mf; n = len(mf)
        self.s = [[] for _ in range(n)]; self.m = [[] for _ in range(n)]; self.v = [[] for _ in range(n)]
    def emit(self, lo=0, hi=None):
        out = []
        for g in range(lo, len(self.mf) if hi is None else hi):
            out.append(self.mf[g]); out += self.s[g] + self.m[g] + self.v[g]
        return out
    def free_for_mem(self, g): return not self.m[g] and not self.s[g]
    def next_free(self, g):
        n = len(self.mf)
        while not self.free_for_mem(g % n): g += 1
        return g % n

def k0():
    L = []
    A = L.append
    A("s_cmp_ge_u32 s2, 576"); A("s_cbranch_scc1 Lp_end")
    A("s_load_dwordx4 s[4:7], s[0:1], 16")
    A("s_load_dwordx2 s[8:9], s[0:1], 64")
    A("v_lshrrev_b32 v1, 6, v0")
    A("v_and_b32 v2, 63, v0")
    A("v_readfirstlane_b32 s3, v1")
    A("v_and_b32 v3, 15, v2")
    A("v_lshrrev_b32 v4, 4, v2")
    A("s_lshl_b32 s10, s2, 2"); A("s_add_u32 s10, s10, s3")
    A("v_lshlrev_b32 v20, 4, v2")
    A("s_waitcnt lgkmcnt(0)")
    A(f"s_cmp_ge_u32 s2, {SUM_BYTES//4096}"); A("s_cbranch_scc1 Lp_nozero")
    srd(L, 24, 8, 9, SUM_BYTES, SUM_OFF)
    A("v_lshlrev_b32 v21, 4, v0")
    for r in range(24, 28): A(f"v_mov_b32 v{r}, 0")
    A("s_lshl_b32 s11, s2, 12")
    A("buffer_store_dwordx4 v[24:27], v21, s[24:27], s11 offen")
    A("Lp_nozero:")
    A("s_cmp_ge_u32 s10, 1152"); A("s_cbranch_scc1 Lp_w2")
    srd(L, 12, 4, 5, W_BYTES)
    srd(L, 16, 8, 9, W_BYTES, W1P_OFF)
    A(f"s_mul_hi_u32 s20, s10, {hx(-(-(1<<32)//12))}")
    A("s_mul_i32 s21, s20, 12"); A("s_sub_u32 s21, s10, s21")
    A(f"s_mul_i32 s21, s21, {32*3072}"); A("s_lshl_b32 s20, s20, 5"); A("s_add_u32 s20, s20, s21")
    A(f"v_mul_u32_u24 v5, {8*3072}, v4"); A("v_lshl_add_u32 v5, v3, 1, v5")
    for jj in range(8):
        A(f"buffer_load_ushort v{8+jj}, v5, s[12:15], s20 offen")
        if jj < 7: A("s_add_u32 s20, s20, 3072")
    A("s_lshl_b32 s11, s10, 10")
    A("s_branch Lp_pack")
    A("Lp_w2:")
    srd(L, 12, 6, 7, W_BYTES)
    srd(L, 16, 8, 9, W_BYTES, W2P_OFF)
    A("s_sub_u32 s10, s10, 1152")
    A(f"s_mul_hi_u32 s20, s10, {hx(-(-(1<<32)//24))}")
    A("s_mul_i32 s21, s20, 24"); A("s_sub_u32 s21, s10, s21")
    A("s_lshr_b32 s22, s21, 1"); A("s_and_b32 s21, s21, 1")
    A("s_lshl_b32 s22, s22, 6"); A("s_lshl_b32 s21, s21, 3"); A("s_add_u32 s21, s21, s22")
    A(f"s_mul_i32 s20, s20, {32*768}"); A("s_add_u32 s20, s20, s21")
    A("v_lshrrev_b32 v5, 2, v3"); A("v_and_b32 v6, 3, v3"); A("v_lshl_add_u32 v5, v5, 3, v6"); A("v_lshlrev_b32 v5, 1, v5")
    A(f"v_mul_u32_u24 v6, {4*768}, v4"); A("v_add_u32 v5, v5, v6")
    A("v_and_b32 v6, 1, v4"); A(f"v_mul_u32_u24 v6, {16*768}, v6")
    A("v_add_u32 v7, v5, v6")
    A(f"v_sub_u32 v6, {16*768}, v6"); A("v_add_u32 v6, v5, v6")
    for jj in range(8):
        A(f"buffer_load_ushort v{8+jj}, v{7 if jj < 4 else 6}, s[12:15], s20 offen offset:{(jj%4)*768}")
    A("s_lshl_b32 s11, s10, 10")
    A("Lp_pack:")
    A("s_waitcnt vmcnt(0)")
    for p in range(4): A(f"v_lshl_or_b32 v{16+p}, v{9+2*p}, 16, v{8+2*p}")
    A("buffer_store_dwordx4 v[16:19], v20, s[16:19], s11 offen")
    A("Lp_end:")
    A("s_endpgm")
    return L, dict(vgpr=32, accum=32, sgpr=32)

def xgroup_sum(L, r, t):
    A = L.append
    A(f"v_mov_b32 v{t}, v{r}"); A("s_nop 1"); A(f"v_permlane32_swap_b32 v{t}, v{r}"); A("s_nop 0"); A(f"v_add_f32 v{r}, v{r}, v{t}")
    A(f"v_mov_b32 v{t}, v{r}"); A("s_nop 1"); A(f"v_permlane16_swap_b32 v{t}, v{r}"); A("s_nop 0"); A(f"v_add_f32 v{r}, v{r}, v{t}")

def stamp(L, idx, sbase=90):
    if not opt.stamps: return
    L.append(f"s_memrealtime s[{sbase+2*idx}:{sbase+2*idx+1}]")

def stamp_out(L, n, wsreg, off, sbase=90):
    if not opt.stamps: return
    A = L.append
    A("s_waitcnt lgkmcnt(0)")
    srd(L, 84, wsreg, wsreg+1, 1 << 20, off)
    for i in range(n): A(f"v_mov_b32 v{8+i}, s{sbase+2*i}")
    A("v_mov_b32 v7, 0")
    A("s_lshl_b32 s88, s2, 2"); A("s_add_u32 s88, s88, s3"); A("s_lshl_b32 s88, s88, 5")
    A("buffer_store_dwordx4 v[8:11], v7, s[84:87], s88 offen")
    A("buffer_store_dwordx2 v[12:13], v7, s[84:87], s88 offen offset:16")

def k1():
    L = []; A = L.append
    vL16, vHS, vX, vAT, vLR = 1, 2, 3, 4, 5
    S0, RT, ACC, PK, TMP, WB = 8, 12, 16, 32, 48, 64
    DW, Y = 64, 160
    sX, sW, sH, sA, sD = 8, 12, 16, 20, 24
    sKAP, sC, sMSK = 28, 29, 30
    sXO, sH0, sH1, sAO, sWO, sM0, sRD, sCNT, sCH, sHB, sAB, sWW, sT, sWS = 31, 32, 33, 34, 35, 36, 37, 38, 39, 40, 41, 42, 43, 44
    CH = 49152
    A("s_cmp_ge_u32 s2, 256"); A("s_cbranch_scc1 L1_end")
    stamp(L, 0)
    A("s_load_dwordx4 s[4:7], s[0:1], 0")
    A("s_load_dwordx2 s[46:47], s[0:1], 64")
    A("v_lshrrev_b32 v6, 6, v0")
    A("v_and_b32 v7, 63, v0")
    A("v_readfirstlane_b32 s3, v6")
    A(f"v_lshlrev_b32 v{vL16}, 4, v7")
    A(f"v_lshlrev_b32 v{vAT}, 2, v7")
    A("v_and_b32 v6, 15, v7"); A("v_lshrrev_b32 v7, 4, v7")
    A(f"v_lshl_add_u32 v{vHS}, v6, 2, v7"); A(f"v_lshlrev_b32 v{vHS}, 4, v{vHS}")
    A(f"v_mul_u32_u24 v{vX}, 768, v6"); A(f"v_lshl_add_u32 v{vX}, v7, 4, v{vX}")
    A("v_lshlrev_b32 v7, 4, v7")
    A(f"s_lshl_b32 s{sT}, s2, 2"); A(f"s_add_u32 s{sT}, s{sT}, s3")
    A(f"s_mul_i32 s{sXO}, s{sT}, {64*768}")
    A(f"s_mul_i32 s{sHB}, s{sT}, {48*4096}")
    A(f"s_and_b32 s{sAB}, s{sT}, {NREP-1}"); A(f"s_mul_i32 s{sAB}, s{sAB}, 6144")
    A(f"s_mul_i32 s{sWW}, s3, 12288")
    if opt.rot:
        A(f"s_lshr_b32 s{sT}, s2, 3")
        A(f"s_mul_i32 s{sCH}, s{sT}, 3"); A(f"s_lshr_b32 s{sCH}, s{sCH}, 2")
    else:
        A(f"s_mov_b32 s{sCH}, 0")
    A(f"s_mov_b32 s{sKAP}, {fl(KAPPA)}"); A(f"s_mov_b32 s{sC}, {fl(CC)}"); A(f"s_mov_b32 s{sMSK}, 0xffff0000")
    A("s_waitcnt lgkmcnt(0)")
    srd(L, sX, 4, 5, X_BYTES); srd(L, sD, 6, 7, 768)
    for s in range(12): A(f"buffer_load_dwordx4 {vq(16+4*s)}, v7, s[{sD}:{sD+3}], 0 offen offset:{64*s}")
    nt = " nt" if opt.x_nt else ""
    for t in range(4):
        for s in range(12):
            A(f"buffer_load_dwordx4 {aq(48*t+4*s)}, v{vX}, s[{sX}:{sX+3}], s{sXO} offen offset:{64*s}{nt}")
        if t < 3: A(f"s_add_u32 s{sXO}, s{sXO}, {16*768}")
    srd(L, sW, 46, 47, W_BYTES, W1P_OFF); srd(L, sH, 46, 47, H_BYTES, H_OFF); srd(L, sA, 46, 47, SUM_BYTES, SUM_OFF)
    A(f"s_add_u32 s{sT}, s{sCH}, 23"); A(f"s_cmp_ge_u32 s{sT}, 24"); A(f"s_cselect_b32 s{sH0}, 24, 0"); A(f"s_sub_u32 s{sT}, s{sT}, s{sH0}")
    A(f"s_lshl_b32 s{sH1}, s{sT}, 13"); A(f"s_add_u32 s{sH1}, s{sH1}, s{sHB}"); A(f"s_add_u32 s{sH1}, s{sH1}, 4096")
    A(f"s_lshl_b32 s{sAO}, s{sT}, 8"); A(f"s_add_u32 s{sAO}, s{sAO}, s{sAB}")
    A(f"s_mul_i32 s{sWS}, s{sCH}, {CH}")
    A("s_waitcnt vmcnt(48)")
    for p in range(48):
        A(f"v_lshlrev_b32 v{DW+2*p}, 16, v{16+p}"); A(f"v_and_b32 v{DW+2*p+1}, s{sMSK}, v{16+p}")
    def dma_chunk(slot):
        o = []
        for q in range(3):
            o.append(f"s_add_u32 s{sWO}, s{sWS}, s{sWW}" if q == 0 else f"s_add_u32 s{sWO}, s{sWO}, 4096")
            o.append(f"s_add_u32 m0, s{sWW}, {slot*CH + q*4096}")
            o.append("s_nop 0")
            for i in range(4): o.append(f"buffer_load_dwordx4 v{vL16}, s[{sW}:{sW+3}], s{sWO} offen offset:{1024*i} lds")
        o += adv_ws()
        return o
    def adv_ws():
        return [f"s_add_u32 s{sWS}, s{sWS}, {CH}", f"s_cmp_ge_u32 s{sWS}, {W_BYTES}", f"s_cselect_b32 s{sWS}, 0, s{sWS}"]
    SA, SB, MU = 16, 18, 20
    issued_after = 0
    for t in range(4):
        for r in range(SA, SA+4): A(f"v_mov_b32 v{r}, 0")
        for s in range(12):
            if s % 2 == 0: A(f"s_waitcnt vmcnt({48 - 12*t - s - 2 + issued_after})")
            for q in range(4): A(f"v_accvgpr_read_b32 v{Y+8*s+2*q+1}, a{48*t+4*s+q}")
            for q in range(4): A(f"v_lshlrev_b32 v{Y+8*s+2*q}, 16, v{Y+8*s+2*q+1}")
            for q in range(4): A(f"v_and_b32 v{Y+8*s+2*q+1}, s{sMSK}, v{Y+8*s+2*q+1}")
            for q in range(4):
                y = Y+8*s+2*q; A(f"v_pk_mul_f32 {vq(y,2)}, {vq(y,2)}, {vq(DW+8*s+2*q,2)}")
            for q in range(4):
                y = Y+8*s+2*q; a = SA if q % 2 == 0 else SB; A(f"v_pk_add_f32 {vq(a,2)}, {vq(a,2)}, {vq(y,2)}")
        if t < 2:
            L.extend(dma_chunk(t)); issued_after += 12
        A(f"v_pk_add_f32 {vq(SA,2)}, {vq(SA,2)}, {vq(SB,2)}"); A(f"v_add_f32 v{MU}, v{SA}, v{SA+1}")
        xgroup_sum(L, MU, MU+2)
        A(f"v_mul_f32 v{MU}, {fl(1/384)}, v{MU}")
        for r in range(SA, SA+4): A(f"v_mov_b32 v{r}, 0")
        for s in range(12):
            for q in range(4):
                y = Y+8*s+2*q; A(f"v_pk_add_f32 {vq(y,2)}, {vq(y,2)}, {vq(MU,2)} op_sel_hi:[1,0] neg_lo:[0,1] neg_hi:[0,1]")
            for q in range(4):
                y = Y+8*s+2*q; a = SA if q % 2 == 0 else SB; A(f"v_pk_fma_f32 {vq(a,2)}, {vq(y,2)}, {vq(y,2)}, {vq(a,2)}")
        A(f"v_pk_add_f32 {vq(SA,2)}, {vq(SA,2)}, {vq(SB,2)}"); A(f"v_add_f32 v{MU}, v{SA}, v{SA+1}")
        xgroup_sum(L, MU, MU+2)
        A(f"v_mov_b32 v{MU+2}, {fl(1e-5)}")
        A(f"v_fmac_f32 v{MU+2}, {fl(1/384)}, v{MU}")
        A(f"v_rsq_f32 v{MU}, v{MU+2}"); A("s_nop 0")
        A(f"v_mul_f32 v{MU}, s{sC}, v{MU}")
        for s in range(12):
            for q in range(4):
                y = Y+8*s+2*q; A(f"v_pk_mul_f32 {vq(y,2)}, {vq(y,2)}, {vq(MU,2)} op_sel_hi:[1,0]")
            for q in range(4):
                y = Y+8*s+2*q; A(f"v_cvt_pk_bf16_f32 v{y}, v{y}, v{y+1}")
            for q in range(4):
                y = Y+8*s+2*q; A(f"v_accvgpr_write_b32 a{48*t+4*s+q}, v{y}")
    for r in range(S0, WB): A(f"v_mov_b32 v{r}, 0")
    A(f"v_mov_b32 v{vLR}, v{vL16}")
    A(f"s_mov_b32 s{sRD}, 0"); A(f"s_mov_b32 s{sM0}, {2*CH}"); A(f"s_mov_b32 s{sCNT}, 24")
    A("s_waitcnt vmcnt(12)")
    A("s_barrier")
    for k in range(12): A(f"ds_read_b128 {vq(WB+4*k)}, v{vLR} offset:{1024*k}")
    stamp(L, 1)
    A("s_waitcnt lgkmcnt(0)")
    mf = []
    for n in range(16):
        sg, t = n // 4, n % 4
        for k in range(12):
            d = vq(ACC+4*t)
            mf.append(f"v_mfma_f32_16x16x32_bf16 {d}, {aq(48*t+4*k)}, {vq(WB+48*(sg%2)+4*k)}, {d if k else 0}")
    G = Gaps(mf)
    for sg in range(4):
        for k in range(12):
            g = 48*sg + 1 + (k*7)//2
            nx = (sg+1) % 4
            G.m[g].append(f"ds_read_b128 {vq(WB+48*(nx%2)+4*k)}, v{vLR} offset:{12288*nx+1024*k}")
        G.s[48*sg+47].append("s_waitcnt lgkmcnt(0)")
    LAG = 2
    def group(n):
        sg, t = (n // 4) % 4, n % 4
        a = ACC+4*t; T = TMP+4*(n % 2); S = S0+sg; o = PK+4*t+2*(sg % 2)
        ops = []
        ops += [(f"v_fma_f32 v{T+i}, v{a+i}, v{a+i}, s{sKAP}", 1) for i in range(4)]
        ops += [(f"v_mul_f32 v{T+i}, v{a+i}, v{T+i}", 1) for i in range(4)]
        ops += [(f"v_exp_f32_e64 v{T+i}, -v{T+i}", 2) for i in range(4)]
        ops += [(f"v_fma_f32 v{T+i}, v{T+i}, s{sC}, s{sC}", 1) for i in range(4)]
        ops += [(f"v_rcp_f32 v{T+i}, v{T+i}", 2) for i in range(4)]
        ops += [(f"v_mul_f32 v{T+i}, v{a+i}, v{T+i}", 1) for i in range(4)]
        q = lambda i: (f"v_mul_f32 v{S}, v{T}, v{T}", 1) if (t == 0 and i == 0) else (f"v_fmac_f32 v{S}, v{T+i}, v{T+i}", 1)
        ops += [q(0), (f"v_cvt_pk_bf16_f32 v{o}, v{T}, v{T+1}", 1), q(1), (f"v_cvt_pk_bf16_f32 v{o+1}, v{T+2}, v{T+3}", 1), q(2)]
        ops += [q(3)]
        return ops
    reduce_ops = [(f"v_permlane32_swap_b32 v{S0}, v{S0+2}", 1), (f"v_permlane32_swap_b32 v{S0+1}, v{S0+3}", 1),
                  (f"v_add_f32 v{RT}, v{S0}, v{S0+2}", 1), (f"v_add_f32 v{RT+1}, v{S0+1}, v{S0+3}", 1),
                  (f"v_permlane16_swap_b32 v{RT}, v{RT+1}", 1), (f"v_add_f32 v{RT}, v{RT}, v{RT+1}", 1)]
    tail = []
    def place(g, ins, kind):
        getattr(G, kind)[g % 192].append(ins)
        if g >= 192: tail.append((g, ins))
    for n in range(16):
        ops = group(n)
        if n == 0:
            w = []; red = list(reduce_ops)
            for i, o in enumerate(ops):
                w.append(o)
                if i in (2, 5, 8, 10, 13, 16): w.append(red.pop(0))
            ops = w
        tot = sum(c for _, c in ops); cum = 0
        for ins, c in ops:
            g = 12*(n+1) + LAG + int(12*(cum + c/2)/tot)
            place(g, ins, 'v'); cum += c
    st_tail = []
    for n in range(16):
        sg, t = n // 4, n % 4
        if sg % 2 == 1:
            g0 = 12*(n+2) + LAG + 1
            g = G.next_free(g0)
            ins = f"buffer_store_dwordx4 {vq(PK+4*t)}, v{vHS}, s[{sH}:{sH+3}], s{sH0 if sg == 1 else sH1} offen offset:{1024*t}"
            G.m[g].append(ins)
            if g0 >= 192: st_tail.append(ins)
    at = f"buffer_atomic_add_f32 v{RT}, v{vAT}, s[{sA}:{sA+3}], s{sAO} offen"
    gat = G.next_free(24 + LAG + 1); G.m[gat].append(at)
    def scal(g, seq):
        for ins in seq:
            g = G.next_free(g); G.s[g].append(ins); g += 1
        return g
    g = scal(gat+1, [f"s_lshl_b32 s{sH0}, s{sCH}, 13", f"s_add_u32 s{sH0}, s{sH0}, s{sHB}", f"s_add_u32 s{sH1}, s{sH0}, 4096",
                     f"s_lshl_b32 s{sAO}, s{sCH}, 8", f"s_add_u32 s{sAO}, s{sAO}, s{sAB}"])
    assert g < 60
    for q in range(3):
        g = 48*q + 2
        pre = [f"s_add_u32 s{sWO}, s{sWS}, s{sWW}", f"s_add_u32 m0, s{sM0}, s{sWW}"] if q == 0 else [f"s_add_u32 s{sWO}, s{sWO}, 4096", "s_add_u32 m0, m0, 4096"]
        g = scal(g, pre)
        for i in range(4):
            g = G.next_free(max(g, 48*q + 6 + 11*i)); G.m[g].append(f"buffer_load_dwordx4 v{vL16}, s[{sW}:{sW+3}], s{sWO} offen offset:{1024*i} lds"); g += 1
        assert g <= 48*q + 47
    def scal_grp(g, seq):
        while any(G.s[x] for x in range(g, g+len(seq))) or any(G.m[x] for x in (g,)): g += 1
        for i, ins in enumerate(seq): G.s[g+i].append(ins)
        return g+len(seq)
    g = scal_grp(100, [f"s_add_u32 s{sRD}, s{sRD}, {CH}", f"s_cmp_ge_u32 s{sRD}, {3*CH}", f"s_cselect_b32 s{sRD}, 0, s{sRD}"])
    G.v[142].append(f"v_add_u32 v{vLR}, s{sRD}, v{vL16}")
    g = scal_grp(150, adv_ws())
    g = scal_grp(g, [f"s_add_u32 s{sM0}, s{sM0}, {CH}", f"s_cmp_ge_u32 s{sM0}, {3*CH}", f"s_cselect_b32 s{sM0}, 0, s{sM0}"])
    g = scal_grp(g, [f"s_add_u32 s{sCH}, s{sCH}, 1", f"s_cmp_ge_u32 s{sCH}, 24", f"s_cselect_b32 s{sCH}, 0, s{sCH}"])
    g = scal_grp(g, [f"s_sub_u32 s{sCNT}, s{sCNT}, 1", f"s_cmp_le_u32 s{sCNT}, 2", f"s_cselect_b32 s{sW+2}, 0, s{sW+2}"])
    g = scal_grp(g, [f"s_cmp_lg_u32 s{sCNT}, 0"])
    assert g < 190
    nvm = sum(1 for x in G.emit(0, 144) if I(x).vmem)
    G.s[143] = [f"s_waitcnt vmcnt({nvm}) lgkmcnt(0)", "s_barrier"]
    body = G.emit()
    A(".p2align 6"); A("L1_loop:")
    pre = list(L)
    L += body
    A("s_cbranch_scc1 L1_loop")
    T = []
    T.append("s_nop 7")
    for _, ins in sorted(tail, key=lambda x: x[0]): T.append(ins)
    T.append("s_nop 1")
    for ins, _ in reduce_ops: T += [ins, "s_nop 1"]
    T += st_tail + [at]
    L += T
    if opt.stamps:
        stamp(L, 2); A("s_waitcnt vmcnt(0)"); stamp(L, 3); stamp_out(L, 6, 46, 200 << 20)
    A("L1_end:")
    A("s_endpgm")
    errs = check_hazards(pre + body + body + T, 'k1')
    return L, dict(vgpr=512, accum=256, sgpr=102, lds=3*CH), errs

def k3():
    L = []; A = L.append
    vL16, vWR, vH0, vH1, vSB, vX = 1, 2, 3, 4, 5, 6
    NW = 6
    WF, HS, SC, BC, TMP, XF, EM = 8, 32, 64, 72, 80, 88, 104
    sX, sW, sH, sO, sA, sG, sB = 8, 12, 16, 20, 24, 28, 32
    sMSK, sT, sWW, sHO, sWO, sM0W, sRD, sHL, sX0, sX1, sXB, sWN, sT2 = 36, 37, 38, 39, 40, 41, 42, 43, 44, 45, 48, 49, 50
    LINK = 52
    WCH = 24576; L_H = 3*WCH; L_SB = L_H + 65536; L_RED = L_SB + 12288; LDS = L_RED + 256
    def acc(T, t):
        q = T*4 + t
        return aq(4*q) if q < 64 else vq(128 + 4*(q-64))
    A("s_cmp_ge_u32 s2, 256"); A("s_cbranch_scc1 L3_end")
    stamp(L, 0)
    A("s_load_dwordx2 s[4:5], s[0:1], 0")
    A("s_load_dwordx4 s[56:59], s[0:1], 32")
    A("s_load_dwordx2 s[6:7], s[0:1], 48")
    A("s_load_dwordx2 s[46:47], s[0:1], 64")
    A("v_lshrrev_b32 v8, 6, v0")
    A("v_and_b32 v7, 63, v0")
    A("v_readfirstlane_b32 s3, v8")
    A(f"v_lshlrev_b32 v{vL16}, 4, v7")
    A("v_and_b32 v8, 15, v7"); A("v_lshrrev_b32 v9, 4, v7")
    A(f"v_mul_u32_u24 v{vX}, 768, v8"); A(f"v_lshl_add_u32 v{vX}, v9, 4, v{vX}")
    A(f"v_lshlrev_b32 v{vSB}, 5, v9"); A(f"v_add_u32 v{vSB}, {L_SB}, v{vSB}")
    A(f"s_lshl_b32 s{sT}, s2, 2"); A(f"s_add_u32 s{sT}, s{sT}, s3")
    A(f"s_mul_i32 s{sXB}, s{sT}, {64*768}")
    A(f"s_mul_i32 s{sHO}, s{sT}, {48*4096}")
    A(f"s_mul_i32 s{sWW}, s3, 6144")
    A(f"s_lshl_b32 s{sHL}, s3, 14"); A(f"s_add_u32 s{sHL}, s{sHL}, {L_H}")
    A("v_and_b32 v10, 1, v9"); A("v_lshlrev_b32 v10, 3, v10")
    A(f"v_add3_u32 v{vH0}, v{vL16}, s{sHL}, v10"); A(f"v_xor_b32 v{vH1}, 8, v{vH0}")
    A("v_lshrrev_b32 v10, 2, v8"); A("v_cmp_eq_u32 vcc, v10, v9")
    A("v_and_b32 v11, 1, v8"); A("v_lshlrev_b32 v11, 4, v11"); A("v_mov_b32 v12, 0x3f80"); A("v_lshlrev_b32 v11, v11, v12")
    A("v_cndmask_b32 v11, 0, v11, vcc")
    A("v_and_b32 v10, 2, v8"); A("v_cmp_eq_u32 vcc, 0, v10")
    for r in (0, 1, 4, 5): A(f"v_mov_b32 v{EM+r}, 0")
    A(f"v_cndmask_b32 v{EM+2}, 0, v11, vcc"); A(f"v_sub_u32 v{EM+3}, v11, v{EM+2}")
    A(f"s_mov_b32 s{sMSK}, 0xffff0000")
    A("v_lshlrev_b32 v110, 3, v0"); A("v_lshlrev_b32 v111, 2, v0")
    A("s_waitcnt lgkmcnt(0)")
    srd(L, sA, 46, 47, SUM_BYTES, SUM_OFF); srd(L, sG, 56, 57, 3072); srd(L, sB, 58, 59, 3072)
    P0 = 128
    for i in range(3):
        for r in range(NREP):
            A(f"s_mov_b32 s{sT}, {r*6144 + i*2048}")
            A(f"buffer_load_dwordx2 {vq(P0+2*(i*NREP+r),2)}, v110, s[{sA}:{sA+3}], s{sT} offen")
    for i in range(3):
        A(f"buffer_load_dword v{112+i}, v111, s[{sG}:{sG+3}], 0 offen offset:{1024*i}")
        A(f"buffer_load_dword v{115+i}, v111, s[{sB}:{sB+3}], 0 offen offset:{1024*i}")
    srd(L, sW, 46, 47, W_BYTES, W2P_OFF); srd(L, sH, 46, 47, H_BYTES, H_OFF); srd(L, sX, 4, 5, X_BYTES); srd(L, sO, 6, 7, X_BYTES)
    def dmaH(slot):
        return ([f"s_add_u32 m0, s{sHL}, {4096*slot}"],
                [f"buffer_load_dwordx4 v{vL16}, s[{sH}:{sH+3}], s{sHO} offen offset:{1024*i} lds" for i in range(4)],
                [f"s_add_u32 s{sHO}, s{sHO}, 4096"])
    def dW(i): return f"buffer_load_dwordx4 v{vL16}, s[{sW}:{sW+3}], s{sWO} offen offset:{1024*i} lds"
    A(f"s_mov_b32 s{sWO}, s{sWW}")
    def pro_W(slot):
        A(f"s_add_u32 m0, s{sWW}, {slot*WCH}"); A("s_nop 0")
        for i in range(3): A(dW(i))
        A(f"s_add_u32 s{sWO}, s{sWO}, 3072"); A("s_add_u32 m0, m0, 3072"); A("s_nop 0")
        for i in range(3): A(dW(i))
        A(f"s_add_u32 s{sWO}, s{sWO}, {WCH-3072}")
    def pro_H(slot):
        a, b, c = dmaH(slot); L.extend(a + ["s_nop 0"] + b + c)
    pro_H(0); pro_W(0); pro_H(1); pro_H(2); pro_W(1)
    for r in range(256): A(f"v_accvgpr_write_b32 a{r}, 0")
    for r in range(176, 256): A(f"v_mov_b32 v{r}, 0")
    A("s_waitcnt vmcnt(24)")
    pro_H(3); pro_W(2)
    for i in range(3):
        b = P0 + 2*i*NREP
        st = 1
        while st < NREP:
            for r in range(0, NREP, 2*st): A(f"v_pk_add_f32 {vq(b+2*r,2)}, {vq(b+2*r,2)}, {vq(b+2*(r+st),2)}")
            st *= 2
    GX = [P0, P0+1, P0+2*NREP, P0+2*NREP+1, P0+4*NREP, P0+4*NREP+1]
    for r in GX: A(f"v_add_f32 v{r}, {fl(1e-6)}, v{r}")
    for r in GX: A(f"v_sqrt_f32 v{r}, v{r}")
    A("s_nop 0")
    A(f"v_add_f32 v8, v{GX[0]}, v{GX[1]}")
    for r in GX[2:]: A(f"v_add_f32 v8, v8, v{r}")
    for sh in (8, 4, 2, 1):
        A("s_nop 1"); A(f"v_add_f32_dpp v8, v8, v8 row_ror:{sh} row_mask:0xf bank_mask:0xf")
    xgroup_sum(L, 8, 9)
    A(f"s_lshl_b32 s{sT}, s3, 2"); A(f"s_add_u32 s{sT}, s{sT}, {L_RED}"); A(f"v_mov_b32 v9, s{sT}")
    A("ds_write_b32 v9, v8")
    A("v_lshrrev_b32 v10, 4, v0"); A("v_lshlrev_b32 v10, 8, v10")
    A("v_bfe_u32 v11, v0, 1, 2"); A("v_lshl_add_u32 v10, v11, 5, v10")
    A("v_lshrrev_b32 v12, 3, v0"); A("v_xor_b32 v12, v12, v11"); A("v_and_b32 v12, 1, v12"); A("v_lshl_add_u32 v10, v12, 4, v10")
    A("v_and_b32 v12, 1, v0"); A("v_lshl_add_u32 v10, v12, 3, v10"); A(f"v_add_u32 v10, {L_SB}, v10")
    A(f"v_mov_b32 v9, {L_RED}")
    for i in range(3):
        A(f"v_lshlrev_b32 v{16+2*i}, 16, v{115+i}"); A(f"v_and_b32 v{17+2*i}, s{sMSK}, v{115+i}")
        A(f"v_lshlrev_b32 v{24+2*i}, 16, v{112+i}"); A(f"v_and_b32 v{25+2*i}, s{sMSK}, v{112+i}")
    for i in range(3): A(f"ds_write_b64 v10, {vq(16+2*i,2)} offset:{4096*i+128}")
    for j in range(6): A(f"v_mul_f32 v{24+j}, v{24+j}, v{GX[j]}")
    A("s_waitcnt lgkmcnt(0)"); A("s_barrier")
    A("ds_read_b128 v[12:15], v9")
    for r in range(128, 176): A(f"v_mov_b32 v{r}, 0")
    A("s_waitcnt lgkmcnt(0)")
    A("v_add_f32 v12, v12, v13"); A("v_add_f32 v14, v14, v15"); A("v_add_f32 v12, v12, v14")
    A(f"v_mov_b32 v13, {fl(1e-6)}"); A(f"v_fmac_f32 v13, {fl(1/1536)}, v12"); A("v_rcp_f32 v13, v13"); A("s_nop 0")
    for j in range(6): A(f"v_fma_f32 v{24+j}, v{24+j}, v13, 1.0")
    for i in range(3): A(f"ds_write_b64 v10, {vq(24+2*i,2)} offset:{4096*i}")
    A(f"v_mov_b32 v{vWR}, v{vL16}")
    A(f"s_mov_b32 s{sRD}, 0"); A(f"s_mov_b32 s{sWN}, {W_BYTES}")
    A("s_waitcnt vmcnt(20) lgkmcnt(0)"); A("s_barrier")
    def h_reads(slot, hs):
        o = []
        for t in range(4):
            o.append(f"ds_read_b64_tr_b16 {vq(hs+4*t,2)}, v{vH0} offset:{4096*slot+1024*t}")
            o.append(f"ds_read_b64_tr_b16 {vq(hs+4*t+2,2)}, v{vH1} offset:{4096*slot+1024*t}")
        return o
    def sb_reads(off):
        return [f"ds_read_b128 {vq(SC)}, v{vSB} offset:{off}", f"ds_read_b128 {vq(BC)}, v{vSB} offset:{off+128}",
                f"ds_read_b128 {vq(SC+4)}, v{vSB} offset:{off+16}", f"ds_read_b128 {vq(BC+4)}, v{vSB} offset:{off+144}"]
    def scale_ops(hs):
        o = []
        for pp in range(8):
            r0, r1 = hs+2*pp, hs+2*pp+1; c = 4*(pp % 2); T = TMP + 4*(pp % 2)
            o += [f"v_lshlrev_b32 v{T}, 16, v{r0}", f"v_and_b32 v{T+1}, s{sMSK}, v{r0}", f"v_lshlrev_b32 v{T+2}, 16, v{r1}", f"v_and_b32 v{T+3}, s{sMSK}, v{r1}"]
            o += [f"v_fma_f32 v{T+i}, v{T+i}, v{SC+c+i}, v{BC+c+i}" for i in range(4)]
            o += [f"v_cvt_pk_bf16_f32 v{r0}, v{T}, v{T+1}", f"v_cvt_pk_bf16_f32 v{r1}, v{T+2}, v{T+3}"]
        return o
    L.extend(sb_reads(0) + h_reads(0, HS))
    for F in range(NW-1): A(f"ds_read_b128 {vq(WF+4*F)}, v{vWR} offset:{1024*F}")
    A(f"s_waitcnt lgkmcnt({NW-1})")
    L.extend(scale_ops(HS))
    A("s_waitcnt lgkmcnt(0)")
    stamp(L, 1)
    mf = []
    for st in range(4):
        for T in range(24):
            for t in (range(4) if T % 2 == 0 else range(3, -1, -1)):
                mf.append(f"v_mfma_f32_16x16x32_bf16 {acc(T,t)}, {vq(WF+4*(T%NW))}, {vq(HS+16*(st%2)+4*t)}, {acc(T,t)}")
    G = Gaps(mf)
    BAR = 80
    nt = " nt" if opt.x3_nt else ""
    late = {24: BAR+1, 25: BAR+3, 26: BAR+5, 27: 88, 28: 92}
    for st in range(4):
        b = 96*st
        for F in range(5, 29):
            g = late.get(F, 4*(F-5))
            G.m[b+g].append(f"ds_read_b128 {vq(WF+4*(F%NW))}, v{vWR} offset:{1024*(F%24)}")
        G.s[b+BAR] = ["WAITBAR", "s_barrier"]
        for F in range(1, 25): G.s[b+4*F-1].append(f"WAITF")
        nx = st+1
        rd = sb_reads(256*nx) + h_reads(nx % 4, HS+16*(nx % 2))
        g = b+1
        for r in rd:
            g = G.next_free(g); G.m[g].append(r)
        g_rd = g
        a, dm, c = dmaH(st)
        g = G.next_free(g+1); G.s[g] += a
        for d in dm:
            g = G.next_free(g+1); G.m[g].append(d); g += 2
        g = G.next_free(g); G.s[g] += c
        if st == 0:
            for bb in range(2):
                for aa in range(2):
                    g = G.next_free(g+1); G.m[g].append(f"buffer_load_dwordx4 {vq(XF+8*aa+4*bb)}, v{vX}, s[{sX}:{sX+3}], s{sX0+bb} offen offset:{64*aa}{nt}"); g += 2
        assert g < b+70
        g = b+66
        while G.s[g] or G.s[g+1] or G.m[g] or G.m[g+1]: g += 1
        G.s[g] += [f"s_add_u32 m0, s{sRD}, s{sWW}", f"s_add_u32 s{sRD}, s{sRD}, {WCH}"]
        G.s[g+1] += [f"s_cmp_ge_u32 s{sRD}, {3*WCH}", f"s_cselect_b32 s{sRD}, 0, s{sRD}"]
        assert g+1 < b+74
        G.v[b+77].append(f"v_add_u32 v{vWR}, s{sRD}, v{vL16}")
        if st == 1: G.s[b+78].append(f"s_mov_b32 s{sW+2}, s{sWN}")
        for i, gg in enumerate((82, 84, 86)): G.m[b+gg].append(dW(i))
        G.s[b+87] += [f"s_add_u32 s{sWO}, s{sWO}, 3072", "s_add_u32 m0, m0, 3072"]
        for i, gg in enumerate((89, 90, 93)): G.m[b+gg].append(dW(i))
        G.s[b+94].append(f"s_add_u32 s{sWO}, s{sWO}, {WCH-3072}")
        g0 = g_rd + 6
        g0 += (3 - (g0 - b) % 4) % 4
        G.s[g0].append("WAITH")
        ops = scale_ops(HS+16*(nx % 2))
        cap = []
        for g in range(g0, b+95):
            c = 2
            if G.m[g]: c = 1 if I(G.m[g][0]).ds else 0
            if g == b+BAR: c = 0
            c -= len(G.v[g])
            cap.append(max(c, 0))
        assert sum(cap) >= len(ops), (sum(cap), len(ops))
        tot = sum(cap); k = 0; cum = 0
        for g, c in zip(range(g0, b+95), cap):
            cum += c
            while k < len(ops) and k < math.ceil(cum*len(ops)/tot) : G.v[g].append(ops[k]); k += 1
        assert k == len(ops)
    G.v[96*3+60].append(f"v_add_u32 v{vSB}, 1024, v{vSB}")
    body = G.emit()
    n = len(body)
    def prev_iter(i):
        j = i
        while True:
            j = (j-1) % n
            yield j
    res = list(body)
    for i, x in enumerate(body):
        if x == "WAITF":
            j = i
            while not I(body[j % n]).mfma: j += 1
            need = I(body[j % n]).ra
            c = 0
            for p in prev_iter(i):
                q = I(body[p]) if body[p] not in ("WAITF", "WAITH", "WAITBAR") else None
                if body[p] == "WAITBAR": c = None; break
                if q and q.ds:
                    if q.w == need: break
                    c += 1
            res[i] = None if c is None else f"s_waitcnt lgkmcnt({c})"
            assert c is None or c <= 15
        elif x == "WAITH":
            c = 0
            for p in prev_iter(i):
                q = I(body[p]) if body[p] not in ("WAITF", "WAITH", "WAITBAR") else None
                if q and q.ds:
                    if 'tr_b16' in q.op: break
                    c += 1
            res[i] = f"s_waitcnt lgkmcnt({c})"
        elif x == "WAITBAR":
            c = 0; seenbar = 0;
            for p in prev_iter(i):
                if body[p] == "WAITBAR": seenbar += 1
                q = I(body[p]) if body[p] not in ("WAITF", "WAITH", "WAITBAR") else None
                if q and q.vmem:
                    if seenbar >= 1 and f"s[{sW}:{sW+3}]" in q.text: break
                    c += 1
            res[i] = f"s_waitcnt vmcnt({c}) lgkmcnt(0)"
    body = []
    for x in res:
        if x is None: continue
        if body and x.startswith("s_waitcnt lgkmcnt") and body[-1].startswith("s_waitcnt lgkmcnt"):
            a = int(x[18:-1]); b_ = int(body[-1][18:-1]); body[-1] = f"s_waitcnt lgkmcnt({min(a, b_)})"
        else: body.append(x)
    trace = list(L)
    for i in range(12):
        D = []
        D.append(f"s_add_u32 s{sX0}, s{sXB}, {(i%2)*24576 + (i//2)*128}")
        D.append(f"s_add_u32 s{sX1}, s{sX0}, 12288")
        if i == 11:
            D.append(f"s_mov_b32 s{sH+2}, 0"); D.append(f"s_mov_b32 s{sWN}, 0")
        L += D; A(f"s_call_b64 s[{LINK}:{LINK+1}], L3_body")
        S = []
        for aa in range(2):
            for v in range(2):
                for bb in range(2):
                    T = 2*(2*(i//2)+aa)+v; t = 2*(i%2)+bb
                    S.append(f"v_mfma_f32_16x16x32_bf16 {acc(T,t)}, {vq(EM+2-2*v)}, {vq(XF+8*aa+4*bb)}, {acc(T,t)}")
        L += S
        trace += D + ["s_nop 0"] + body + ["s_nop 0"] + S
    E = []
    stamp(E, 2)
    E.append("s_waitcnt lgkmcnt(0)")
    E.append("s_nop 7")
    k = 0
    for t in range(4):
        E.append(f"s_add_u32 s{sX0}, s{sXB}, {12288*t}")
        for P in range(12):
            o = 8 + 12*(k % 8); k += 1
            src = []
            for v in range(2):
                q = (2*P+v)*4 + t
                if q < 64:
                    for r in range(4): E.append(f"v_accvgpr_read_b32 v{o+4+4*v+r}, a{4*q+r}")
                    src.append(o+4+4*v)
                else: src.append(128+4*(q-64))
            for v in range(2):
                for r in range(2): E.append(f"v_cvt_pk_bf16_f32 v{o+2*v+r}, v{src[v]+2*r}, v{src[v]+2*r+1}")
            E.append(f"buffer_store_dwordx4 {vq(o)}, v{vX}, s[{sO}:{sO+3}], s{sX0} offen offset:{64*P}")
    if opt.stamps:
        stamp(E, 3); E.append("s_waitcnt vmcnt(0)"); stamp(E, 4); stamp_out(E, 6, 46, 201 << 20)
    L += E
    A("L3_end:")
    A("s_endpgm")
    A(".p2align 6"); A("L3_body:")
    L += body
    A(f"s_setpc_b64 s[{LINK}:{LINK+1}]")
    errs = check_hazards(trace + E, 'k3')
    return L, dict(vgpr=512, accum=256, sgpr=102, lds=LDS), errs

HEADER = open('cdna_kernels/' + NAME + '.s.ref').read().split('; Override launch')[0]

def build():
    p, pd = k0(); errs = check_hazards(p, 'k0')
    a, ad, e = k1(); errs += e
    c, cd, e = k3(); errs += e
    for x in errs: print(x, file=sys.stderr)
    assert not errs
    ks = [('prep_kernel', p, pd, 576), ('gemm1_kernel', a, ad, 256), ('gemm2_kernel', c, cd, 256)]
    out = [HEADER.rstrip()]
    for n, _, d, g in ks: out.append(f"; @launch kernel={n} grid=({g},1,1) block=(256,1,1) lds={d.get('lds', 0)}")
    out.append('.amdgcn_target "amdgcn-amd-amdhsa--gfx950"'); out.append('.text')
    for n, body, d, g in ks:
        out += [f".globl {n}", ".p2align 8", f".type {n},@function", f"{n}:"]
        out += [x if x.endswith(':') or x.startswith('.') else '    ' + x for x in body]
    out.append('.section .rodata,"a"')
    for n, body, d, g in ks:
        out += [".p2align 6", f".amdhsa_kernel {n}", f"  .amdhsa_next_free_vgpr {d['vgpr']}", f"  .amdhsa_next_free_sgpr {d['sgpr']}",
                f"  .amdhsa_accum_offset {d['accum']}", "  .amdhsa_group_segment_fixed_size 0", "  .amdhsa_kernarg_size 72",
                "  .amdhsa_user_sgpr_count 2", "  .amdhsa_user_sgpr_kernarg_segment_ptr 1", "  .amdhsa_system_sgpr_workgroup_id_x 1",
                "  .amdhsa_float_denorm_mode_32 3", ".end_amdhsa_kernel"]
    return "\n".join(out) + "\n"

if __name__ == '__main__':
    outp = sys.argv[1]
    for kv in sys.argv[2:]:
        k, v = kv.split('='); setattr(opt, k, eval(v))
    open(outp, 'w').write(build())
```

```python
import sys, struct, math
from asmlib import check_hazards, I

NAME = 'standalone__modern_conv_block_slak__vision'
def f2u(x): return struct.unpack('<I', struct.pack('<f', x))[0]
def hx(x): return '0x%08x' % (x & 0xffffffff)
def fl(x): return hx(f2u(x))

ALPHA = 2*math.sqrt(2/math.pi)*math.log2(math.e)
BETA = ALPHA*0.044715
CC = BETA**(1/3)
KAPPA = ALPHA/CC
KAP16 = 0x44ea

X_BYTES = 65536*768
W_BYTES = 384*1536*2
H_OFF, H_BYTES = 0, 65536*1536*2
W2P_OFF = 194 << 20
SUM_OFF = 196 << 20
STAMP_OFF = 200 << 20

class Opt:
    stamps = False
    gelu = 'gate16'
    nrep = 4
    xld = ''
    hst = ''
    hld = ''
    wld = ''
    ost = 'sc1'
    abl1 = ''
    abl3 = ''
    pf = True
opt = Opt()
def fg(s): return (' ' + s.replace('+', ' ')) if s else ''
def kap_const(): return hx(KAP16*0x10001) if opt.gelu == 'gate16' else fl(KAPPA)
def c_in(): return ALPHA/4.9140625 if opt.gelu == 'gate16' else CC

def srd(L, d, p, nbytes, off=0):
    if off:
        L.append(f"s_add_u32 s{d}, s{p}, {hx(off)}")
        L.append(f"s_addc_u32 s{d+1}, s{p+1}, 0")
        L.append(f"s_and_b32 s{d+1}, s{d+1}, 0xffff")
    else:
        L.append(f"s_mov_b32 s{d}, s{p}")
        L.append(f"s_and_b32 s{d+1}, s{p+1}, 0xffff")
    L.append(f"s_mov_b32 s{d+2}, {hx(nbytes)}")
    L.append(f"s_mov_b32 s{d+3}, 0x20000")
def S4(d): return f"s[{d}:{d+3}]"
def vq(r, n=4): return f"v[{r}:{r+n-1}]"
def aq(r, n=4): return f"a[{r}:{r+n-1}]"
def rq(loc, o=0, n=4): return f"{loc[0]}[{loc[1]+o}:{loc[1]+o+n-1}]"

class Gaps:
    def __init__(self, mf):
        self.mf = mf; n = len(mf)
        self.s = [[] for _ in range(n)]; self.m = [[] for _ in range(n)]; self.v = [[] for _ in range(n)]
    def emit(self, lo=0, hi=None):
        out = []
        for g in range(lo, len(self.mf) if hi is None else hi):
            out.append(self.mf[g]); out += self.s[g] + self.m[g] + self.v[g]
        return out
    def free(self, g): return not self.m[g] and not self.s[g]
    def next_free(self, g):
        n = len(self.mf)
        while not self.free(g % n): g += 1
        return g % n
    def scal(self, g, seq):
        first = None
        for ins in seq:
            g = self.next_free(g)
            if first is None: first = g
            self.s[g].append(ins); g += 1
        return g

def ablate(body, what):
    out = []
    for x in body:
        q = I(x)
        if 'v' in what and q.valu and not x.startswith('v_add_u32'): continue
        if 'b' in what and x == 's_barrier': continue
        if 'd' in what and q.lds_dma: continue
        if 's' in what and q.vmem and '_store' in x: continue
        if 'l' in what and q.ds: continue
        out.append(x)
    return out

def check_scc(body):
    last = None
    for x in body:
        op = x.split()[0]
        if op.startswith(('s_cselect', 's_cbranch_scc')): assert last and last.startswith('s_cmp'), (x, last)
        elif op.startswith('s_') and not op.startswith(('s_mov', 's_waitcnt', 's_barrier', 's_nop', 's_mul', 's_mem')): last = op

def resolve_waits(body, is_key, nskip):
    n = len(body); W = ("WAITL", "WAITBAR")
    Q = [None if x in W else I(x) for x in body]
    res = []
    for i, x in enumerate(body):
        if x == "WAITL":
            need = set(); j = i+1
            while body[j % n] not in W:
                need |= Q[j % n].r; j += 1
            best = None; c = 0; p = i
            for _ in range(n):
                p = (p-1) % n
                if body[p] == "WAITBAR": break
                q = Q[p]
                if q is None: continue
                if q.ds:
                    if q.w & need: best = c; break
                    c += 1
                need -= q.w
                if c > 15: break
            if best is not None: res.append(f"s_waitcnt lgkmcnt({best})")
            elif c > 15: res.append("s_waitcnt lgkmcnt(15)")
        elif x == "WAITBAR":
            c = 0; k = 0; p = i
            while True:
                p = (p-1) % n; q = Q[p]
                if q is not None and q.vmem:
                    if is_key(q):
                        if k == nskip: break
                        k += 1
                    c += 1
            res.append(f"s_waitcnt vmcnt({c}) lgkmcnt(0)")
        else: res.append(x)
        if x in W:
            seen = set(); j = i+1
            while body[j % n] not in W:
                q = Q[j % n]; assert not (seen & q.r), q.text
                if q.ds: seen |= q.w
                j += 1
    return res

def xgroup_sum(L, r, t):
    A = L.append
    A(f"v_mov_b32 v{t}, v{r}"); A("s_nop 1"); A(f"v_permlane32_swap_b32 v{t}, v{r}"); A("s_nop 0"); A(f"v_add_f32 v{r}, v{r}, v{t}")
    A(f"v_mov_b32 v{t}, v{r}"); A("s_nop 1"); A(f"v_permlane16_swap_b32 v{t}, v{r}"); A("s_nop 0"); A(f"v_add_f32 v{r}, v{r}, v{t}")

ST0 = 78
def stamp(L, idx, cyc=None):
    if not opt.stamps: return
    L.append(f"s_memrealtime s[{ST0+2*idx}:{ST0+2*idx+1}]")
    if cyc is not None: L.append(f"s_memtime s[{ST0+16+2*cyc}:{ST0+17+2*cyc}]")

def code_prefetch(L, r, label=None, shift=7):
    if not opt.pf: return
    A = L.append
    A("s_getpc_b64 s[22:23]")
    if label:
        A(f"Lpc_{label}:")
        A(f"s_add_u32 s22, s22, {label}-Lpc_{label}"); A("s_addc_u32 s23, s23, 0")
    A(f"v_lshlrev_b32 v{r}, {shift}, v0"); A(f"v_mov_b32 v{r+1}, s23")
    A(f"v_add_co_u32 v{r}, vcc, s22, v{r}"); A("s_nop 1"); A(f"v_addc_co_u32 v{r+1}, vcc, 0, v{r+1}, vcc")
    A(f"global_load_dword v{r}, v[{r}:{r+1}], off")

def poll(L, name, sD, off, target, v):
    A = L.append
    A("s_mov_b32 s22, 0x40000")
    A(f"Lw_{name}:")
    A(f"v_readfirstlane_b32 s23, v{v}"); A("s_nop 1")
    A(f"s_cmp_ge_u32 s23, {target}"); A(f"s_cbranch_scc1 Lw_{name}_ok")
    A(f"buffer_load_dword v{v}, off, {S4(sD)}, 0 offset:{off} sc1")
    A("s_sub_u32 s22, s22, 1"); A("s_cmp_lg_u32 s22, 0")
    A("s_waitcnt vmcnt(0)")
    A(f"s_cbranch_scc1 Lw_{name}")
    A(f"Lw_{name}_ok:")

def kernel():
    L = []; A = L.append
    NREP = opt.nrep; SUM_BYTES = NREP*6144; NZ = SUM_BYTES//1024
    pX, pDW, pW1, pW2, pG, pB, pO, pD, pWS = 4, 6, 8, 10, 12, 14, 16, 18, 20
    sX, sW, sH, sA, sD, sT1, sT2 = 24, 28, 32, 36, 40, 44, 48
    (sKAP, sC, sMSK, sXB, sH0, sH1, sAO, sWO, sM0, sRD, sCNT, sCH, sHB, sAB, sWW, sT, sWS, sU, sGW, sWL, sV) = range(52, 73)
    vD0, vHS, vAT, vLR, vLB, vD1, vD2, vD3 = 1, 2, 3, 4, 5, 6, 7, 14
    S0, RT, ACC, PK, TMP, WB = 8, 12, 16, 32, 48, 56
    CH = 49152
    raw = [('v', 128+4*f) if f < 32 else ('a', 192+4*(f-32)) for f in range(48)]
    A("s_cmp_ge_u32 s2, 256"); A("s_cbranch_scc1 L_end")
    stamp(L, 0)
    A("s_load_dwordx16 s[4:19], s[0:1], 0")
    A("s_load_dwordx2 s[20:21], s[0:1], 64")
    code_prefetch(L, 126)
    A("v_lshrrev_b32 v8, 6, v0")
    A("v_and_b32 v9, 63, v0")
    A("v_readfirstlane_b32 s3, v8")
    A("v_and_b32 v10, 15, v9"); A("v_lshrrev_b32 v11, 4, v9")
    A("v_mul_u32_u24 v124, 768, v10"); A("v_lshl_add_u32 v124, v11, 4, v124")
    A("v_lshlrev_b32 v125, 4, v11")
    A("v_lshlrev_b32 v123, 4, v9")
    A(f"s_lshl_b32 s{sGW}, s2, 2"); A(f"s_add_u32 s{sGW}, s{sGW}, s3")
    A(f"s_mul_i32 s{sXB}, s{sGW}, {64*768}")
    for r in range(116, 120): A(f"v_mov_b32 v{r}, 0")
    A("s_waitcnt lgkmcnt(0)")
    srd(L, sX, pX, X_BYTES); srd(L, sT1, pDW, 768); srd(L, sA, pWS, SUM_BYTES, SUM_OFF)
    A(f"s_lshl_b32 s{sT}, s3, 8"); A(f"s_add_u32 s{sT}, s{sT}, s2"); A(f"s_cmp_lt_u32 s{sT}, {NZ}")
    A(f"s_cselect_b32 s{sA+2}, s{sA+2}, 0"); A(f"s_cselect_b32 s{sV}, 4, 0"); A(f"s_cselect_b32 s{sT}, s{sT}, 0")
    A(f"s_lshl_b32 s{sT}, s{sT}, 10")
    A(f"buffer_store_dwordx4 v[116:119], v123, {S4(sA)}, s{sT} offen sc1")
    for s in range(12): A(f"buffer_load_dwordx4 {vq(16+4*s)}, v125, {S4(sT1)}, 0 offen offset:{64*s}")
    A(f"s_mov_b32 s{sT}, s{sXB}")
    for t in range(4):
        for s in range(12):
            A(f"buffer_load_dwordx4 {rq(raw[12*t+s])}, v124, {S4(sX)}, s{sT} offen offset:{64*s}{fg(opt.xld)}")
        if t < 3: A(f"s_add_u32 s{sT}, s{sT}, {16*768}")
    A(f"s_mov_b32 s{sA+2}, 0")
    srd(L, sW, pW1, W_BYTES); srd(L, sH, pWS, H_BYTES, H_OFF); srd(L, sD, pD, 256)
    A(f"s_mov_b32 s{sKAP}, {kap_const()}"); A(f"s_mov_b32 s{sC}, {fl(c_in())}"); A(f"s_mov_b32 s{sMSK}, 0xffff0000")
    A(f"v_lshlrev_b32 v{vAT}, 2, v9")
    A(f"v_lshl_add_u32 v{vHS}, v10, 2, v11"); A(f"v_lshlrev_b32 v{vHS}, 4, v{vHS}")
    A(f"v_and_b32 v12, 31, v9"); A("v_lshrrev_b32 v13, 5, v9"); A("v_lshlrev_b32 v13, 11, v13"); A(f"v_lshl_add_u32 v{vLB}, v12, 3, v13")
    A("v_bfe_u32 v12, v9, 1, 2"); A("v_bfe_u32 v13, v9, 3, 1"); A("v_lshl_add_u32 v12, v13, 3, v12"); A("v_mul_u32_u24 v12, 3072, v12")
    A("v_and_b32 v13, 1, v9"); A("v_lshl_add_u32 v12, v13, 4, v12"); A(f"v_lshl_add_u32 v{vD0}, v11, 5, v12")
    A(f"v_add_u32 v{vD1}, {4*3072-1024}, v{vD0}"); A(f"v_add_u32 v{vD2}, {16*3072-2048}, v{vD0}"); A(f"v_add_u32 v{vD3}, {20*3072-3072}, v{vD0}")
    vD = (vD0, vD1, vD2, vD3)
    def diag_masks(m0, m1, val):
        A("v_lshrrev_b32 v12, 2, v10"); A("v_cmp_eq_u32 vcc, v12, v11")
        A("v_and_b32 v13, 1, v10"); A("v_lshlrev_b32 v13, 4, v13"); A(f"v_mov_b32 v12, {val}"); A("v_lshlrev_b32 v13, v13, v12")
        A("v_cndmask_b32 v13, 0, v13, vcc")
        A("v_and_b32 v12, 2, v10"); A("v_cmp_eq_u32 vcc, 0, v12"); A("s_nop 1")
        A(f"v_cndmask_b32 v{m0}, 0, v13, vcc"); A(f"v_sub_u32 v{m1}, v13, v{m0}")
    diag_masks(120, 121, '0xffff')
    A("v_lshrrev_b32 v12, 2, v10"); A("v_and_b32 v13, 3, v10"); A("v_lshl_add_u32 v12, v12, 3, v13"); A("v_lshlrev_b32 v12, 1, v12")
    A(f"v_mul_u32_u24 v13, {4*768}, v11"); A("v_add_u32 v12, v12, v13")
    A("v_and_b32 v13, 1, v11"); A(f"v_mul_u32_u24 v13, {16*768}, v13")
    A("v_add_u32 v15, v12, v13"); A(f"v_sub_u32 v13, {16*768}, v13"); A(f"v_add_u32 v{vLR}, v12, v13")
    vG0, vG1 = 15, vLR
    A(f"s_mul_i32 s{sHB}, s{sGW}, {48*4096}")
    A(f"s_and_b32 s{sAB}, s{sGW}, {NREP-1}"); A(f"s_mul_i32 s{sAB}, s{sAB}, 6144")
    A(f"s_mul_i32 s{sWW}, s3, {96*3072}"); A(f"s_mul_i32 s{sWL}, s3, 12288")
    A(f"s_lshr_b32 s{sT}, s2, 3"); A(f"s_mul_i32 s{sCH}, s{sT}, 3"); A(f"s_lshr_b32 s{sCH}, s{sCH}, 2")
    A(f"s_add_u32 s{sT}, s{sCH}, 23"); A(f"s_cmp_ge_u32 s{sT}, 24"); A(f"s_cselect_b32 s{sU}, 24, 0"); A(f"s_sub_u32 s{sT}, s{sT}, s{sU}")
    A(f"s_lshl_b32 s{sH1}, s{sT}, 13"); A(f"s_add_u32 s{sH1}, s{sH1}, s{sHB}"); A(f"s_add_u32 s{sH1}, s{sH1}, 4096")
    A(f"s_mov_b32 s{sAO}, 0")
    A(f"s_lshl_b32 s{sWS}, s{sCH}, 7")
    A("s_waitcnt vmcnt(48)")
    A(f"s_mov_b32 s{sD+2}, s{sV}"); A("v_mov_b32 v12, 1")
    A(f"buffer_atomic_add v12, v{vAT}, {S4(sD)}, 0 offen sc1")
    A(f"s_mov_b32 s{sD+2}, 256")
    after = 1
    for p in range(48): A(f"v_and_b32 v{16+p}, v{120+p%2}, v{16+p}")
    for p in range(48): A(f"v_accvgpr_write_b32 a{144+p}, v{16+p}")
    def adv_ws(): return [f"s_add_u32 s{sWS}, s{sWS}, 128", f"s_cmp_ge_u32 s{sWS}, 3072", f"s_cselect_b32 s{sWS}, 0, s{sWS}"]
    def dW1(i): return f"buffer_load_dwordx4 v{vD[i]}, {S4(sW)}, s{sWO} offen offset:{1024*i}{fg(opt.wld)} lds"
    def dma_chunk(slot):
        for q in range(3):
            A(f"s_add_u32 s{sWO}, s{sWS}, s{sWW}" if q == 0 else f"s_add_u32 s{sWO}, s{sWO}, {32*3072}")
            A(f"s_add_u32 m0, s{sWL}, {slot*CH + q*4096}")
            A("s_nop 0")
            for i in range(4): A(dW1(i))
        L.extend(adv_ws())
    def w2_gather(task, dst):
        if task == 0: A(f"s_mov_b32 s{sT}, s{sGW}")
        else:
            A(f"s_cmp_lt_u32 s{sGW}, 128"); A(f"s_cselect_b32 s{sT1+2}, s{sT1+2}, 0"); A(f"s_cselect_b32 s{sT}, s{sGW}, 0"); A(f"s_add_u32 s{sT}, s{sT}, 1024")
        A(f"s_mul_hi_u32 s{sU}, s{sT}, {hx(-(-(1<<32)//24))}")
        A(f"s_mul_i32 s{sV}, s{sU}, 24"); A(f"s_sub_u32 s{sT}, s{sT}, s{sV}")
        A(f"s_lshr_b32 s{sV}, s{sT}, 1"); A(f"s_and_b32 s{sT}, s{sT}, 1")
        A(f"s_lshl_b32 s{sV}, s{sV}, 6"); A(f"s_lshl_b32 s{sT}, s{sT}, 3"); A(f"s_add_u32 s{sT}, s{sT}, s{sV}")
        A(f"s_mul_i32 s{sU}, s{sU}, {32*768}"); A(f"s_add_u32 s{sT}, s{sT}, s{sU}")
        for jj in range(8): A(f"buffer_load_ushort v{dst+jj}, v{vG0 if jj < 4 else vG1}, {S4(sT1)}, s{sT} offen offset:{(jj%4)*768}")
    Y, SQ, GA = 16, 8, 112
    M16 = "v_mfma_f32_16x16x16_bf16"
    for t in range(4):
        for s in range(12):
            if s % 2 == 0: A(f"s_waitcnt vmcnt({48 - 12*t - s - 2 + after})")
            for v in range(2):
                A(f"{M16} {vq(SQ)}, {aq(144+4*s+2*v,2)}, {rq(raw[12*t+s],2*v,2)}, {vq(SQ) if s+v else 0}")
        if t < 2: dma_chunk(t); after += 12
        elif t == 2:
            srd(L, sT1, pW2, W_BYTES); w2_gather(0, GA); w2_gather(1, GA+8); after += 16
            A(f"buffer_load_dword v{vG0}, off, {S4(sD)}, 0 sc1"); after += 1
        else: A("s_nop 7")
        A(f"v_add_f32 v{SQ}, v{SQ}, v{SQ+1}"); A(f"v_add_f32 v{SQ+2}, v{SQ+2}, v{SQ+3}"); A(f"v_add_f32 v{SQ}, v{SQ}, v{SQ+2}")
        xgroup_sum(L, SQ, SQ+1)
        A(f"v_mul_f32 v{SQ}, {fl(-1/384)}, v{SQ}")
        for r in range(1, 4): A(f"v_mov_b32 v{SQ+r}, v{SQ}")
        A("s_nop 1")
        for s in range(12):
            for v in range(2):
                A(f"{M16} {vq(Y+8*s+4*v)}, {aq(144+4*s+2*v,2)}, {rq(raw[12*t+s],2*v,2)}, {vq(SQ)}")
        A("s_nop 2")
        for p in range(48):
            y = vq(Y+2*p, 2); a = vq(SQ+2*(p % 2), 2)
            A(f"v_pk_mul_f32 {a}, {y}, {y}" if p < 2 else f"v_pk_fma_f32 {a}, {y}, {y}, {a}")
        A(f"v_pk_add_f32 {vq(SQ,2)}, {vq(SQ,2)}, {vq(SQ+2,2)}"); A(f"v_add_f32 v{SQ}, v{SQ}, v{SQ+1}")
        xgroup_sum(L, SQ, SQ+1)
        A(f"v_mov_b32 v{SQ+2}, {fl(1e-5)}")
        A(f"v_fmac_f32 v{SQ+2}, {fl(1/384)}, v{SQ}")
        A(f"v_rsq_f32 v{SQ}, v{SQ+2}"); A("s_nop 0")
        A(f"v_mul_f32 v{SQ}, s{sC}, v{SQ}")
        for s in range(12):
            for q in range(4):
                y = Y+8*s+2*q; A(f"v_pk_mul_f32 {vq(y,2)}, {vq(y,2)}, {vq(SQ,2)} op_sel_hi:[1,0]")
            for q in range(4):
                y = Y+8*s+2*q; A(f"v_cvt_pk_bf16_f32 v{y}, v{y}, v{y+1}")
            for q in range(4):
                y = Y+8*s+2*q; A(f"v_accvgpr_write_b32 a{48*t+4*s+q}, v{y}")
    A("s_waitcnt vmcnt(0)")
    A("s_barrier")
    def wreg(sg, k): return WB + 4*(6*(sg % 2) + k) if k < 6 else WB + 48 + 4*(k-6)
    def wread(sg, k, rho): return f"ds_read_b64_tr_b16 {vq(wreg(sg,k)+2*rho,2)}, v{vLR} offset:{4096*k+1024*rho+256*sg}"
    srd(L, sT2, pWS, W_BYTES, W2P_OFF)
    for p in range(8): A(f"v_lshl_or_b32 v{16+p}, v{GA+2*p+1}, 16, v{GA+2*p}")
    A(f"v_lshlrev_b32 v24, 2, v{vAT}")
    A(f"v_mov_b32 v{vLR}, v{vLB}")
    A(f"s_lshl_b32 s{sT}, s{sGW}, 10")
    A(f"buffer_store_dwordx4 v[16:19], v24, {S4(sT2)}, s{sT} offen sc1")
    A(f"s_mov_b32 s{sT2+2}, s{sT1+2}"); A(f"s_and_b32 s{sT}, s{sT}, {hx(127 << 10)}"); A(f"s_add_u32 s{sT}, s{sT}, {1024 << 10}")
    A(f"buffer_store_dwordx4 v[20:23], v24, {S4(sT2)}, s{sT} offen sc1")
    for k in range(12):
        for rho in range(2): A(wread(0, k, rho))
        if k == 6: A("s_waitcnt lgkmcnt(4)")
    poll(L, 'a', sD, 0, NZ, vG0)
    A(f"s_mov_b32 s{sRD}, 0"); A(f"s_mov_b32 s{sM0}, {2*CH}"); A(f"s_mov_b32 s{sCNT}, 24")
    stamp(L, 1, 0)
    A("s_waitcnt lgkmcnt(0)")
    mf = []
    for n in range(16):
        sg, t = n // 4, n % 4
        for kk in range(12):
            k = kk if t % 2 == 0 else 11-kk
            d = vq(ACC+4*t)
            mf.append(f"v_mfma_f32_16x16x32_bf16 {d}, {aq(48*t+4*k)}, {vq(wreg(sg,k))}, {d if kk else 0}")
    G = Gaps(mf)
    for sg in range(4):
        nx = (sg+1) % 4
        for j in range(12): G.m[48*sg + 1 + 3*j].append(wread(nx, j//2, j % 2))
        for k in range(6, 12):
            for rho in range(2): G.m[48*sg + 37 + (11-k)].append(wread(nx, k, rho))
        G.s[48*sg+47].append("s_waitcnt lgkmcnt(0)")
    LAG = 2 if opt.gelu == 'add' else 3
    def group(n):
        sg, t = (n // 4) % 4, n % 4
        a = ACC+4*t; T = TMP+4*(n % 2); S = S0+sg; o = PK+4*t+2*(sg % 2)
        ops = []
        if opt.gelu == 'add':
            ops += [(f"v_fma_f32 v{T+i}, v{a+i}, v{a+i}, s{sKAP}", 1) for i in range(4)]
            ops += [(f"v_mul_f32 v{T+i}, v{a+i}, v{T+i}", 1) for i in range(4)]
            ops += [(f"v_exp_f32_e64 v{T+i}, -v{T+i}", 2) for i in range(4)]
            ops += [(f"v_add_f32 v{T+i}, 1.0, v{T+i}", 1) for i in range(4)]
            ops += [(f"v_rcp_f32 v{T+i}, v{T+i}", 2) for i in range(4)]
            ops += [(f"v_mul_f32 v{T+i}, v{a+i}, v{T+i}", 1) for i in range(4)]
        else:
            P2 = (0, 2)
            ops += [(f"v_cvt_pk_f16_f32 v{T+i}, v{a+i}, v{a+i+1}", 1) for i in P2]
            ops += [(f"v_pk_fma_f16 v{T+i+1}, v{T+i}, v{T+i}, s{sKAP}", 1) for i in P2]
            ops += [(f"v_pk_mul_f16 v{T+i}, v{T+i}, v{T+i+1} neg_lo:[1,0] neg_hi:[1,0]", 1) for i in P2]
            ops += [(f"v_exp_f16 v{T+i+1}, v{T+i}", 2) for i in P2]
            ops += [(f"v_exp_f16_sdwa v{T+i+1}, v{T+i} dst_sel:WORD_1 dst_unused:UNUSED_PRESERVE src0_sel:WORD_1", 2) for i in P2]
            ops += [(f"v_pk_add_f16 v{T+i}, v{T+i+1}, 1.0 op_sel_hi:[1,0]", 1) for i in P2]
            ops += [(f"v_rcp_f16_sdwa v{T+i+1}, v{T+i} dst_sel:DWORD dst_unused:UNUSED_PAD src0_sel:WORD_1", 2) for i in P2]
            ops += [(f"v_rcp_f16 v{T+i}, v{T+i}", 2) for i in P2]
            ops += [(f"v_fma_mix_f32 v{T+i}, v{a+i}, v{T+i}, 0 op_sel_hi:[0,1,0]", 1) for i in (1, 3, 0, 2)]
        q = lambda i: (f"v_mul_f32 v{S}, v{T+i}, v{T+i}", 1) if (t == 0 and i == 1) else (f"v_fmac_f32 v{S}, v{T+i}, v{T+i}", 1)
        ops += [q(1), (f"v_cvt_pk_bf16_f32 v{o}, v{T}, v{T+1}", 1), q(3), (f"v_cvt_pk_bf16_f32 v{o+1}, v{T+2}, v{T+3}", 1), q(0), q(2)]
        return ops
    reduce_ops = [(f"v_permlane32_swap_b32 v{S0}, v{S0+2}", 1), (f"v_permlane32_swap_b32 v{S0+1}, v{S0+3}", 1),
                  (f"v_add_f32 v{RT}, v{S0}, v{S0+2}", 1), (f"v_add_f32 v{RT+1}, v{S0+1}, v{S0+3}", 1),
                  (f"v_permlane16_swap_b32 v{RT}, v{RT+1}", 1), (f"v_add_f32 v{RT}, v{RT}, v{RT+1}", 1)]
    tail = []
    for n in range(16):
        ops = group(n)
        if n == 0:
            w = []; red = list(reduce_ops)
            for i, o in enumerate(ops):
                w.append(o)
                if i in (2, 5, 8, 10, 13, 16): w.append(red.pop(0))
            ops = w
        tot = sum(c for _, c in ops); cum = 0
        for ins, c in ops:
            g = 12*(n+1) + LAG + int(12*(cum + c/2)/tot)
            G.v[g % 192].append(ins); cum += c
            if g >= 192: tail.append(ins)
    st_tail = []
    for n in range(16):
        sg, t = n // 4, n % 4
        if sg % 2 == 1:
            g0 = 12*(n+2) + LAG + 1
            ins = f"buffer_store_dwordx4 {vq(PK+4*t)}, v{vHS}, {S4(sH)}, s{sH0 if sg == 1 else sH1} offen offset:{1024*t}{fg(opt.hst)}"
            G.m[G.next_free(g0)].append(ins)
            if g0 >= 192: st_tail.append(ins)
    at = f"buffer_atomic_add_f32 v{RT}, v{vAT}, {S4(sA)}, s{sAO} offen"
    gat = G.next_free(24 + LAG + 1); G.m[gat].append(at)
    for q in range(3):
        pre = [f"s_add_u32 s{sWO}, s{sWS}, s{sWW}", f"s_add_u32 m0, s{sM0}, s{sWL}"] if q == 0 else [f"s_add_u32 s{sWO}, s{sWO}, {32*3072}", "s_add_u32 m0, m0, 4096"]
        g = G.scal(48*q + 2, pre)
        for i, gg in enumerate((9, 21, 33, 44)):
            g = G.next_free(max(g, 48*q + gg)); G.m[g].append(dW1(i)); g += 1
        assert g <= 48*q + 47
    g = G.scal(gat+1, [f"s_lshl_b32 s{sH0}, s{sCH}, 13", f"s_add_u32 s{sH0}, s{sH0}, s{sHB}", f"s_add_u32 s{sH1}, s{sH0}, 4096",
                       f"s_lshl_b32 s{sAO}, s{sCH}, 8", f"s_add_u32 s{sAO}, s{sAO}, s{sAB}", f"s_mov_b32 s{sA+2}, {SUM_BYTES}"])
    assert g < 70
    g = G.scal(104, [f"s_add_u32 s{sRD}, s{sRD}, {CH}", f"s_cmp_ge_u32 s{sRD}, {3*CH}", f"s_cselect_b32 s{sRD}, 0, s{sRD}"])
    G.v[142].append(f"v_add_u32 v{vLR}, s{sRD}, v{vLB}")
    g = G.scal(146, adv_ws())
    g = G.scal(g, [f"s_add_u32 s{sM0}, s{sM0}, {CH}", f"s_cmp_ge_u32 s{sM0}, {3*CH}", f"s_cselect_b32 s{sM0}, 0, s{sM0}"])
    g = G.scal(g, [f"s_add_u32 s{sCH}, s{sCH}, 1", f"s_cmp_ge_u32 s{sCH}, 24", f"s_cselect_b32 s{sCH}, 0, s{sCH}"])
    g = G.scal(g, [f"s_sub_u32 s{sCNT}, s{sCNT}, 1", f"s_cmp_le_u32 s{sCNT}, 2", f"s_cselect_b32 s{sW+2}, 0, s{sW+2}", f"s_cmp_gt_u32 s{sCNT}, 1"])
    assert g < 190
    nvm = sum(1 for x in G.emit(0, 144) if I(x).vmem)
    G.s[143] = [f"s_waitcnt vmcnt({nvm}) lgkmcnt(0)", "s_barrier"]
    body1 = ablate(G.emit(), opt.abl1) + ["s_cbranch_scc1 L1_loop"]
    check_scc(body1)
    A(".p2align 6"); A("L1_loop:")
    trace = list(L) + body1 + body1
    L += body1
    mark = len(L)
    A(f"s_cmp_eq_u32 s{sCNT}, 0"); A("s_cbranch_scc1 L1_done")
    code_prefetch(L, vD1, shift=6)
    A("s_branch L1_loop")
    A("L1_done:")
    A("s_nop 5")
    L += tail
    A("s_nop 1")
    for ins, _ in reduce_ops: L += [ins, "s_nop 1"]
    L += st_tail + [at]
    stamp(L, 2, 1)
    vL16, vWR, vH0, vH1, vSB, vX = 1, 2, 3, 4, 5, 6
    NW = 6
    WF, HS, SC, BC, TM3 = 8, 32, 64, 72, 80
    sO, sG, sB = sX, sT1, sT2
    sHO, sHL, sWN = sH0, sH1, sAO
    WCH = 24576; L_H = 3*WCH; L_SB = L_H + 65536; L_RED = L_SB + 12288; LDS = L_RED + 256
    A("v_and_b32 v9, 63, v0"); A("v_and_b32 v10, 15, v0"); A("v_bfe_u32 v11, v0, 4, 2")
    A("v_lshlrev_b32 v110, 3, v0"); A("v_lshlrev_b32 v111, 2, v0"); A("v_lshlrev_b32 v109, 2, v9")
    srd(L, sG, pG, 3072); srd(L, sB, pB, 3072)
    A(f"s_cmp_eq_u32 s3, 0"); A(f"s_cselect_b32 s{sD+2}, 132, 0")
    A("v_mov_b32 v108, 1")
    A("s_waitcnt vmcnt(0)"); A("s_barrier")
    A(f"buffer_atomic_add v108, v109, {S4(sD)}, 0 offen offset:128 sc1")
    for i in range(3):
        A(f"buffer_load_dword v{112+i}, v111, {S4(sG)}, 0 offen offset:{1024*i}")
        A(f"buffer_load_dword v{115+i}, v111, {S4(sB)}, 0 offen offset:{1024*i}")
    A(f"v_lshlrev_b32 v{vL16}, 4, v9")
    A(f"s_mov_b32 s{sHO}, s{sHB}")
    A(f"s_lshl_b32 s{sHL}, s3, 14"); A(f"s_add_u32 s{sHL}, s{sHL}, {L_H}")
    def dmaH(slot):
        return ([f"s_add_u32 m0, s{sHL}, {4096*slot}"],
                [f"buffer_load_dwordx4 v{vL16}, {S4(sH)}, s{sHO} offen offset:{1024*i}{fg(opt.hld)} lds" for i in range(4)],
                [f"s_add_u32 s{sHO}, s{sHO}, 4096"])
    for slot in range(4):
        a, b, c = dmaH(slot); L.extend(a + ["s_nop 0"] + b + c)
    diag_masks(120, 121, '0x3f80')
    A(f"v_mul_u32_u24 v{vX}, 768, v10"); A(f"v_lshl_add_u32 v{vX}, v11, 4, v{vX}")
    A(f"v_lshlrev_b32 v{vSB}, 5, v11"); A(f"v_add_u32 v{vSB}, {L_SB}, v{vSB}")
    A("v_and_b32 v12, 1, v11"); A("v_lshlrev_b32 v12, 3, v12")
    A(f"v_add3_u32 v{vH0}, v{vL16}, s{sHL}, v12"); A(f"v_xor_b32 v{vH1}, 8, v{vH0}")
    A(f"v_mov_b32 v{vWR}, v{vL16}")
    for r in range(4): A(f"v_mov_b32 v{104+r}, v{128+r}")
    A("s_nop 1")
    src = list(raw); src[0] = ('v', 104)
    free = [('a', 4*q) for q in range(48)] + [raw[0]]
    accloc = {}
    for f in list(range(47, 0, -1)) + [0]:
        t, P = f // 12, f % 12
        for v in range(2):
            d = free.pop(0); accloc[(2*P+v, t)] = d
            A(f"{M16} {rq(d)}, v[120:121], {rq(src[f],2*v,2)}, 0")
        if f: free.append(raw[f])
    assert not free and len(set(accloc.values())) == 96
    def acc(T, t): return rq(accloc[(T, t)])
    srd(L, sW, pWS, W_BYTES, W2P_OFF); srd(L, sO, pO, X_BYTES)
    A(f"s_mul_i32 s{sWW}, s3, 6144"); A(f"s_mov_b32 s{sWO}, s{sWW}")
    A("v_lshrrev_b32 v10, 4, v0"); A("v_lshlrev_b32 v10, 8, v10")
    A("v_bfe_u32 v11, v0, 1, 2"); A("v_lshl_add_u32 v10, v11, 5, v10")
    A("v_lshrrev_b32 v12, 3, v0"); A("v_xor_b32 v12, v12, v11"); A("v_and_b32 v12, 1, v12"); A("v_lshl_add_u32 v10, v12, 4, v10")
    A("v_and_b32 v12, 1, v0"); A("v_lshl_add_u32 v10, v12, 3, v10"); A(f"v_add_u32 v10, {L_SB}, v10")
    A("s_waitcnt vmcnt(16)")
    for i in range(3):
        A(f"v_lshlrev_b32 v{16+2*i}, 16, v{115+i}"); A(f"v_and_b32 v{17+2*i}, s{sMSK}, v{115+i}")
        A(f"v_lshlrev_b32 v{24+2*i}, 16, v{112+i}"); A(f"v_and_b32 v{25+2*i}, s{sMSK}, v{112+i}")
    for i in range(3): A(f"ds_write_b64 v10, {vq(16+2*i,2)} offset:{4096*i+128}")
    A("s_cmp_lg_u32 s3, 0"); A("s_cbranch_scc1 Lw_b_ok")
    A("v_mov_b32 v108, 0"); A("s_nop 0")
    poll(L, 'b', sD, 128, 256, 108)
    A("s_barrier")
    stamp(L, 3)
    P0 = 40
    for i in range(3):
        for r in range(NREP):
            A(f"s_mov_b32 s{sT}, {r*6144 + i*2048}")
            A(f"buffer_load_dwordx2 {vq(P0+2*(i*NREP+r),2)}, v110, {S4(sA)}, s{sT} offen sc1")
    def dW(i): return f"buffer_load_dwordx4 v{vL16}, {S4(sW)}, s{sWO} offen offset:{1024*i}{fg(opt.wld)} lds"
    for slot in range(2):
        A(f"s_add_u32 m0, s{sWW}, {slot*WCH}"); A("s_nop 0")
        for i in range(3): A(dW(i))
        A(f"s_add_u32 s{sWO}, s{sWO}, 3072"); A("s_add_u32 m0, m0, 3072"); A("s_nop 0")
        for i in range(3): A(dW(i))
        A(f"s_add_u32 s{sWO}, s{sWO}, {WCH-3072}")
    A(f"s_add_u32 m0, s{sWW}, {2*WCH}"); A("s_nop 0"); A(dW(0)); A(dW(1))
    A("s_waitcnt vmcnt(14)")
    for i in range(3):
        b = P0 + 2*i*NREP; st = 1
        while st < NREP:
            for r in range(0, NREP, 2*st): A(f"v_pk_add_f32 {vq(b+2*r,2)}, {vq(b+2*r,2)}, {vq(b+2*(r+st),2)}")
            st *= 2
    GX = [P0, P0+1, P0+2*NREP, P0+2*NREP+1, P0+4*NREP, P0+4*NREP+1]
    A(f"s_mov_b32 s{sT}, {fl(1/c_in()**2)}"); A(f"v_mov_b32 v8, {fl(1e-6)}")
    for r in GX: A(f"v_fma_f32 v{r}, v{r}, s{sT}, v8")
    for r in GX: A(f"v_sqrt_f32 v{r}, v{r}")
    A("s_nop 0")
    A(f"v_add_f32 v8, v{GX[0]}, v{GX[1]}")
    for r in GX[2:]: A(f"v_add_f32 v8, v8, v{r}")
    for sh in (8, 4, 2, 1):
        A("s_nop 1"); A(f"v_add_f32_dpp v8, v8, v8 row_ror:{sh} row_mask:0xf bank_mask:0xf")
    xgroup_sum(L, 8, 9)
    A(f"s_lshl_b32 s{sT}, s3, 2"); A(f"s_add_u32 s{sT}, s{sT}, {L_RED}"); A(f"v_mov_b32 v9, s{sT}")
    A("ds_write_b32 v9, v8")
    A(f"v_mov_b32 v9, {L_RED}")
    for j in range(6): A(f"v_mul_f32 v{24+j}, v{24+j}, v{GX[j]}")
    A("s_waitcnt lgkmcnt(0)"); A("s_barrier")
    A("ds_read_b128 v[12:15], v9")
    def h_reads(slot, hs):
        o = []
        for t in range(4):
            o.append(f"ds_read_b64_tr_b16 {vq(hs+4*t,2)}, v{vH0} offset:{4096*slot+1024*t}")
            o.append(f"ds_read_b64_tr_b16 {vq(hs+4*t+2,2)}, v{vH1} offset:{4096*slot+1024*t}")
        return o
    def sb_reads(off):
        return [f"ds_read_b128 {vq(SC)}, v{vSB} offset:{off}", f"ds_read_b128 {vq(BC)}, v{vSB} offset:{off+128}",
                f"ds_read_b128 {vq(SC+4)}, v{vSB} offset:{off+16}", f"ds_read_b128 {vq(BC+4)}, v{vSB} offset:{off+144}"]
    def scale_ops(hs):
        o = []
        for pp in range(8):
            r0, r1 = hs+2*pp, hs+2*pp+1; c = 4*(pp % 2); T = TM3 + 4*(pp % 2)
            o += [f"v_lshlrev_b32 v{T}, 16, v{r0}", f"v_and_b32 v{T+1}, s{sMSK}, v{r0}", f"v_lshlrev_b32 v{T+2}, 16, v{r1}", f"v_and_b32 v{T+3}, s{sMSK}, v{r1}"]
            o += [f"v_fma_f32 v{T+i}, v{T+i}, v{SC+c+i}, v{BC+c+i}" for i in range(4)]
            o += [f"v_cvt_pk_bf16_f32 v{r0}, v{T}, v{T+1}", f"v_cvt_pk_bf16_f32 v{r1}, v{T+2}, v{T+3}"]
        return o
    L.extend(h_reads(0, HS))
    A("s_waitcnt lgkmcnt(8)")
    A("v_add_f32 v12, v12, v13"); A("v_add_f32 v14, v14, v15"); A("v_add_f32 v12, v12, v14")
    A(f"v_mov_b32 v13, {fl(1e-6*c_in())}"); A(f"v_fmac_f32 v13, {fl(c_in()/1536)}, v12"); A("v_rcp_f32 v13, v13")
    A(f"v_mov_b32 v14, {fl(1/c_in())}")
    for j in range(6): A(f"v_fma_f32 v{24+j}, v{24+j}, v13, v14")
    for i in range(3): A(f"ds_write_b64 v10, {vq(24+2*i,2)} offset:{4096*i}")
    A(f"s_mov_b32 s{sRD}, 0"); A(f"s_mov_b32 s{sCNT}, 12"); A(f"s_mov_b32 s{sWN}, {W_BYTES}")
    A("s_waitcnt vmcnt(2) lgkmcnt(0)"); A("s_barrier")
    L.extend(sb_reads(0))
    for F in range(NW-1): A(f"ds_read_b128 {vq(WF+4*F)}, v{vWR} offset:{1024*F}")
    A(f"s_waitcnt lgkmcnt({NW-1})")
    L.extend(scale_ops(HS))
    stamp(L, 4, 2)
    A("s_waitcnt lgkmcnt(0)")
    mf = []
    for st in range(4):
        for T in range(24):
            for t in (range(4) if T % 2 == 0 else range(3, -1, -1)):
                mf.append(f"v_mfma_f32_16x16x32_bf16 {acc(T,t)}, {vq(WF+4*(T%NW))}, {vq(HS+16*(st%2)+4*t)}, {acc(T,t)}")
    G = Gaps(mf)
    BAR = 80
    late = {24: BAR+1, 25: BAR+3, 26: BAR+5, 27: 88, 28: 92}
    for st in range(4):
        b = 96*st
        for F in range(5, 29):
            G.m[b+late.get(F, 4*(F-5))].append(f"ds_read_b128 {vq(WF+4*(F%NW))}, v{vWR} offset:{1024*(F%24)}")
        G.s[b+BAR] = ["WAITBAR", "s_barrier"]
        for F in range(1, 25): G.s[b+4*F-1].append("WAITL")
        G.m[b+2].append(dW(2))
        G.s[b+5].append(f"s_add_u32 s{sWO}, s{sWO}, 3072"); G.s[b+9].append("s_add_u32 m0, m0, 3072")
        for i, gg in enumerate((13, 22, 33)): G.m[b+gg].append(dW(i))
        a, dm, c = dmaH(st)
        G.s[b+37] += a; G.s[b+38].append(f"s_add_u32 s{sWO}, s{sWO}, {WCH-3072}")
        for d, gg in zip(dm, (42, 53, 62, 70)): G.m[b+gg].append(d)
        G.s[b+73] += c
        G.s[b+74].append(f"s_add_u32 m0, s{sRD}, s{sWW}")
        G.s[b+76].append(f"s_add_u32 s{sRD}, s{sRD}, {WCH}")
        G.s[b+77].append(f"s_cmp_ge_u32 s{sRD}, {3*WCH}")
        G.s[b+78].append(f"s_cselect_b32 s{sRD}, 0, s{sRD}")
        G.v[b+79].append(f"v_add_u32 v{vWR}, s{sRD}, v{vL16}")
        if st == 1: G.s[b+66].append(f"s_mov_b32 s{sW+2}, s{sWN}")
        for i, gg in enumerate((82, 90)): G.m[b+gg].append(dW(i))
        if st == 3:
            G.s[b+84].append(f"s_sub_u32 s{sCNT}, s{sCNT}, 1"); G.s[b+86].append(f"s_cmp_gt_u32 s{sCNT}, 1")
        nx = st+1
        rd = sb_reads(256*nx) + h_reads(nx % 4, HS+16*(nx % 2))
        g = b+1; rdg = []
        for r in rd:
            g = G.next_free(g); G.m[g].append(r); rdg.append(g)
        ops = scale_ops(HS+16*(nx % 2))
        g0 = rdg[4] + 6
        cap = []
        for g in range(g0, b+95):
            c = 2
            if G.m[g]: c = 1 if I(G.m[g][0]).ds else 0
            if g == b+BAR: c = 0
            c -= len(G.v[g])
            cap.append(max(c, 0))
        assert sum(cap) >= len(ops), (sum(cap), len(ops))
        tot = sum(cap); k = 0; cum = 0
        for g, c in zip(range(g0, b+95), cap):
            cum += c
            while k < len(ops) and k < math.ceil(cum*len(ops)/tot):
                assert g >= rdg[4 + k//10] + 6
                G.v[g].append(ops[k]); k += 1
        assert k == len(ops)
    G.v[96*3+60].append(f"v_add_u32 v{vSB}, 1024, v{vSB}")
    body3 = resolve_waits(G.emit(), lambda q: S4(sW) in q.text, 6)
    body3 = ablate(body3, opt.abl3) + ["s_cbranch_scc1 L3_loop"]
    check_scc(body3)
    A(".p2align 6"); A("L3_loop:")
    trace += L[mark:] + body3 + body3
    L += body3
    mark = len(L)
    A(f"s_cmp_eq_u32 s{sCNT}, 0"); A("s_cbranch_scc1 L3_done")
    A(f"s_mov_b32 s{sH+2}, 0"); A(f"s_mov_b32 s{sWN}, 0")
    code_prefetch(L, 104, shift=5)
    A("s_branch L3_loop")
    A("L3_done:")
    stamp(L, 5, 3)
    A("s_waitcnt lgkmcnt(0)")
    A("s_nop 5")
    k = 0
    for t in range(4):
        A(f"s_add_u32 s{sT}, s{sXB}, {12288*t}")
        for P in range(12):
            o = 8 + 12*(k % 8); k += 1
            sr = []
            for v in range(2):
                c, r0 = accloc[(2*P+v, t)]
                if c == 'a':
                    for r in range(4): A(f"v_accvgpr_read_b32 v{o+4+4*v+r}, a{r0+r}")
                    sr.append(o+4+4*v)
                else: sr.append(r0)
            for v in range(2):
                for r in range(2): A(f"v_cvt_pk_bf16_f32 v{o+2*v+r}, v{sr[v]+2*r}, v{sr[v]+2*r+1}")
            A(f"buffer_store_dwordx4 {vq(o)}, v{vX}, {S4(sO)}, s{sT} offen offset:{64*P}{fg(opt.ost)}")
    if opt.stamps:
        stamp(L, 6); A("s_waitcnt vmcnt(0)"); stamp(L, 7)
        A("s_waitcnt lgkmcnt(0)")
        srd(L, sT1, pWS, 1 << 20, STAMP_OFF)
        A(f"s_sub_u32 s{ST0+16}, s{ST0+18}, s{ST0+16}"); A(f"s_sub_u32 s{ST0+18}, s{ST0+22}, s{ST0+20}")
        for i in range(10): A(f"v_mov_b32 v{8+i}, s{ST0+2*i}")
        A("v_mov_b32 v7, 0"); A(f"s_lshl_b32 s{sT}, s{sGW}, 6")
        for i in range(3): A(f"buffer_store_dwordx4 {vq(8+4*i)}, v7, {S4(sT1)}, s{sT} offen offset:{16*i}")
    trace += L[mark:]
    A("L_end:")
    A("s_endpgm")
    errs = check_hazards(trace, 'k')
    return L, max(LDS, 3*CH), errs

def build():
    body, lds, errs = kernel()
    for x in errs: print(x, file=sys.stderr)
    assert not errs or opt.abl1 or opt.abl3
    n = NAME + '_kernel'
    out = [open('header.txt').read().rstrip()]
    out.append(f"; @launch grid=(256,1,1) block=(256,1,1) lds={lds}")
    out.append('.amdgcn_target "amdgcn-amd-amdhsa--gfx950"'); out.append('.text')
    out += [f".globl {n}", ".p2align 8", f".type {n},@function", f"{n}:"]
    out += [x if x.endswith(':') or x.startswith('.') else '    ' + x for x in body]
    out.append('.fill 2048, 4, 0xbf800000')
    out.append('.section .rodata,"a"')
    out += [".p2align 6", f".amdhsa_kernel {n}", "  .amdhsa_next_free_vgpr 512", "  .amdhsa_next_free_sgpr 102",
            "  .amdhsa_accum_offset 256", "  .amdhsa_group_segment_fixed_size 0", "  .amdhsa_kernarg_size 72",
            "  .amdhsa_user_sgpr_count 2", "  .amdhsa_user_sgpr_kernarg_segment_ptr 1", "  .amdhsa_system_sgpr_workgroup_id_x 1",
            "  .amdhsa_float_denorm_mode_32 3", ".end_amdhsa_kernel"]
    return "\n".join(out) + "\n"

if __name__ == '__main__':
    outp = sys.argv[1]
    for kv in sys.argv[2:]:
        k, v = kv.split('=')
        assert hasattr(opt, k), k
        setattr(opt, k, v if isinstance(getattr(opt, k), str) else eval(v))
    open(outp, 'w').write(build())
```

```python
import sys, struct, math
from asmlib import check_hazards, I

NAME = 'standalone__modern_conv_block_slak__vision'
def f2u(x): return struct.unpack('<I', struct.pack('<f', x))[0]
def hx(x): return '0x%08x' % (x & 0xffffffff)
def fl(x): return hx(f2u(x))

ALPHA = 2*math.sqrt(2/math.pi)*math.log2(math.e)
BETA = ALPHA*0.044715
CC = BETA**(1/3)
KAPPA = ALPHA/CC
KAP16 = 0x44ea

X_BYTES = 65536*768
W_BYTES = 384*1536*2
H_OFF, H_BYTES = 0, 65536*1536*2
W2P_OFF = 194 << 20
SUM_OFF = 196 << 20
STAMP_OFF = 200 << 20

class Opt:
    stamps = False
    gelu = 'gate16'
    nrep = 4
    xld = ''
    hst = ''
    hld = ''
    wld = ''
    ost = 'sc1'
    abl1 = ''
    abl3 = ''
    pf = True
    dbgst = False
opt = Opt()
def fg(s): return (' ' + s.replace('+', ' ')) if s else ''
def kap_const(): return hx(KAP16*0x10001) if opt.gelu == 'gate16' else fl(KAPPA)
def c_in(): return ALPHA/4.9140625 if opt.gelu == 'gate16' else CC

def srd(L, d, p, nbytes, off=0):
    if off:
        L.append(f"s_add_u32 s{d}, s{p}, {hx(off)}")
        L.append(f"s_addc_u32 s{d+1}, s{p+1}, 0")
        L.append(f"s_and_b32 s{d+1}, s{d+1}, 0xffff")
    else:
        L.append(f"s_mov_b32 s{d}, s{p}")
        L.append(f"s_and_b32 s{d+1}, s{p+1}, 0xffff")
    L.append(f"s_mov_b32 s{d+2}, {hx(nbytes)}")
    L.append(f"s_mov_b32 s{d+3}, 0x20000")
def S4(d): return f"s[{d}:{d+3}]"
def vq(r, n=4): return f"v[{r}:{r+n-1}]"
def aq(r, n=4): return f"a[{r}:{r+n-1}]"
def rq(loc, o=0, n=4): return f"{loc[0]}[{loc[1]+o}:{loc[1]+o+n-1}]"

class Gaps:
    def __init__(self, mf):
        self.mf = mf; n = len(mf)
        self.s = [[] for _ in range(n)]; self.m = [[] for _ in range(n)]; self.v = [[] for _ in range(n)]
    def emit(self, lo=0, hi=None):
        out = []
        for g in range(lo, len(self.mf) if hi is None else hi):
            out.append(self.mf[g]); out += self.s[g] + self.m[g] + self.v[g]
        return out
    def free(self, g): return not self.m[g] and not self.s[g]
    def next_free(self, g):
        n = len(self.mf)
        while not self.free(g % n): g += 1
        return g % n
    def scal(self, g, seq):
        first = None
        for ins in seq:
            g = self.next_free(g)
            if first is None: first = g
            self.s[g].append(ins); g += 1
        return g

def ablate(body, what):
    out = []
    for x in body:
        q = I(x)
        if 'v' in what and q.valu and not x.startswith('v_add_u32'): continue
        if 'b' in what and x == 's_barrier': continue
        if 'd' in what and q.lds_dma: continue
        if 's' in what and q.vmem and '_store' in x: continue
        if 'l' in what and q.ds: continue
        out.append(x)
    return out

def check_scc(body):
    last = None
    for x in body:
        op = x.split()[0]
        if op.startswith(('s_cselect', 's_cbranch_scc')): assert last and last.startswith('s_cmp'), (x, last)
        elif op.startswith('s_') and not op.startswith(('s_mov', 's_waitcnt', 's_barrier', 's_nop', 's_mul', 's_mem')): last = op

def resolve_waits(body, is_key, nskip):
    n = len(body); W = ("WAITL", "WAITBAR")
    Q = [None if x in W else I(x) for x in body]
    res = []
    for i, x in enumerate(body):
        if x == "WAITL":
            need = set(); j = i+1
            while body[j % n] not in W:
                need |= Q[j % n].r; j += 1
            best = None; c = 0; p = i
            for _ in range(n):
                p = (p-1) % n
                if body[p] == "WAITBAR": break
                q = Q[p]
                if q is None: continue
                if q.ds:
                    if q.w & need: best = c; break
                    c += 1
                need -= q.w
                if c > 15: break
            if best is not None: res.append(f"s_waitcnt lgkmcnt({best})")
            elif c > 15: res.append("s_waitcnt lgkmcnt(15)")
        elif x == "WAITBAR":
            c = 0; k = 0; p = i
            while True:
                p = (p-1) % n; q = Q[p]
                if q is not None and q.vmem:
                    if is_key(q):
                        if k == nskip: break
                        k += 1
                    c += 1
            res.append(f"s_waitcnt vmcnt({c}) lgkmcnt(0)")
        else: res.append(x)
        if x in W:
            seen = set(); j = i+1
            while body[j % n] not in W:
                q = Q[j % n]; assert not (seen & q.r), q.text
                if q.ds: seen |= q.w
                j += 1
    return res

def xgroup_sum(L, r, t):
    A = L.append
    A(f"v_mov_b32 v{t}, v{r}"); A("s_nop 1"); A(f"v_permlane32_swap_b32 v{t}, v{r}"); A("s_nop 0"); A(f"v_add_f32 v{r}, v{r}, v{t}")
    A(f"v_mov_b32 v{t}, v{r}"); A("s_nop 1"); A(f"v_permlane16_swap_b32 v{t}, v{r}"); A("s_nop 0"); A(f"v_add_f32 v{r}, v{r}, v{t}")

ST0 = 78
def stamp(L, idx, cyc=None):
    if not opt.stamps: return
    L.append(f"s_memrealtime s[{ST0+2*idx}:{ST0+2*idx+1}]")
    if cyc is not None: L.append(f"s_memtime s[{ST0+16+2*cyc}:{ST0+17+2*cyc}]")

def code_prefetch(L, r, label=None, shift=7):
    if not opt.pf: return
    A = L.append
    A("s_getpc_b64 s[22:23]")
    if label:
        A(f"Lpc_{label}:")
        A(f"s_add_u32 s22, s22, {label}-Lpc_{label}"); A("s_addc_u32 s23, s23, 0")
    A(f"v_lshlrev_b32 v{r}, {shift}, v0"); A(f"v_mov_b32 v{r+1}, s23")
    A(f"v_add_co_u32 v{r}, vcc, s22, v{r}"); A("s_nop 1"); A(f"v_addc_co_u32 v{r+1}, vcc, 0, v{r+1}, vcc")
    A(f"global_load_dword v{r}, v[{r}:{r+1}], off")

def poll(L, name, sD, off, target, v):
    A = L.append
    A("s_mov_b32 s22, 0x40000")
    A(f"Lw_{name}:")
    A(f"v_readfirstlane_b32 s23, v{v}"); A("s_nop 1")
    A(f"s_cmp_ge_u32 s23, {target}"); A(f"s_cbranch_scc1 Lw_{name}_ok")
    A(f"buffer_load_dword v{v}, off, {S4(sD)}, 0 offset:{off} sc1")
    A("s_sub_u32 s22, s22, 1"); A("s_cmp_lg_u32 s22, 0")
    A("s_waitcnt vmcnt(0)")
    A(f"s_cbranch_scc1 Lw_{name}")
    A(f"Lw_{name}_ok:")

def kernel():
    L = []; A = L.append
    NREP = opt.nrep; SUM_BYTES = NREP*6144; NZ = SUM_BYTES//1024
    pX, pDW, pW1, pW2, pG, pB, pO, pD, pWS = 4, 6, 8, 10, 12, 14, 16, 18, 20
    sX, sW, sH, sA, sD, sT1, sT2 = 24, 28, 32, 36, 40, 44, 48
    (sKAP, sC, sMSK, sXB, sH0, sH1, sAO, sWO, sM0, sRD, sCNT, sCH, sHB, sAB, sWW, sT, sWS, sU, sGW, sWL, sV) = range(52, 73)
    vD0, vHS, vAT, vLR, vLB, vD1, vD2, vD3 = 1, 2, 3, 4, 5, 6, 7, 14
    S0, RT, ACC, PK, TMP, WB = 8, 12, 16, 32, 48, 56
    CH = 49152
    raw = [('v', 128+4*f) if f < 32 else ('a', 192+4*(f-32)) for f in range(48)]
    A("s_cmp_ge_u32 s2, 256"); A("s_cbranch_scc1 L_end")
    stamp(L, 0)
    A("s_load_dwordx16 s[4:19], s[0:1], 0")
    A("s_load_dwordx2 s[20:21], s[0:1], 64")
    code_prefetch(L, 126)
    A("v_lshrrev_b32 v8, 6, v0")
    A("v_and_b32 v9, 63, v0")
    A("v_readfirstlane_b32 s3, v8")
    A("v_and_b32 v10, 15, v9"); A("v_lshrrev_b32 v11, 4, v9")
    A("v_mul_u32_u24 v124, 768, v10"); A("v_lshl_add_u32 v124, v11, 4, v124")
    A("v_lshlrev_b32 v125, 4, v11")
    A("v_lshlrev_b32 v123, 4, v9")
    A(f"s_lshl_b32 s{sGW}, s2, 2"); A(f"s_add_u32 s{sGW}, s{sGW}, s3")
    A(f"s_mul_i32 s{sXB}, s{sGW}, {64*768}")
    for r in range(116, 120): A(f"v_mov_b32 v{r}, 0")
    A("s_waitcnt lgkmcnt(0)")
    srd(L, sX, pX, X_BYTES); srd(L, sT1, pDW, 768); srd(L, sA, pWS, SUM_BYTES, SUM_OFF)
    A(f"s_lshl_b32 s{sT}, s3, 8"); A(f"s_add_u32 s{sT}, s{sT}, s2"); A(f"s_cmp_lt_u32 s{sT}, {NZ}")
    A(f"s_cselect_b32 s{sA+2}, s{sA+2}, 0"); A(f"s_cselect_b32 s{sV}, 4, 0"); A(f"s_cselect_b32 s{sT}, s{sT}, 0")
    A(f"s_lshl_b32 s{sT}, s{sT}, 10")
    A(f"buffer_store_dwordx4 v[116:119], v123, {S4(sA)}, s{sT} offen sc1")
    for s in range(12): A(f"buffer_load_dwordx4 {vq(16+4*s)}, v125, {S4(sT1)}, 0 offen offset:{64*s}")
    A(f"s_mov_b32 s{sT}, s{sXB}")
    for t in range(4):
        for s in range(12):
            A(f"buffer_load_dwordx4 {rq(raw[12*t+s])}, v124, {S4(sX)}, s{sT} offen offset:{64*s}{fg(opt.xld)}")
        if t < 3: A(f"s_add_u32 s{sT}, s{sT}, {16*768}")
    A(f"s_mov_b32 s{sA+2}, 0")
    srd(L, sW, pW1, W_BYTES); srd(L, sH, pWS, H_BYTES, H_OFF); srd(L, sD, pD, 256)
    A(f"s_mov_b32 s{sKAP}, {kap_const()}"); A(f"s_mov_b32 s{sC}, {fl(c_in())}"); A(f"s_mov_b32 s{sMSK}, 0xffff0000")
    A(f"v_lshlrev_b32 v{vAT}, 2, v9")
    A(f"v_lshl_add_u32 v{vHS}, v10, 2, v11"); A(f"v_lshlrev_b32 v{vHS}, 4, v{vHS}")
    A(f"v_and_b32 v12, 31, v9"); A("v_lshrrev_b32 v13, 5, v9"); A("v_lshlrev_b32 v13, 11, v13"); A(f"v_lshl_add_u32 v{vLB}, v12, 3, v13")
    A("v_bfe_u32 v12, v9, 1, 2"); A("v_bfe_u32 v13, v9, 3, 1"); A("v_lshl_add_u32 v12, v13, 3, v12"); A("v_mul_u32_u24 v12, 3072, v12")
    A("v_and_b32 v13, 1, v9"); A("v_lshl_add_u32 v12, v13, 4, v12"); A(f"v_lshl_add_u32 v{vD0}, v11, 5, v12")
    A(f"v_add_u32 v{vD1}, {4*3072-1024}, v{vD0}"); A(f"v_add_u32 v{vD2}, {16*3072-2048}, v{vD0}"); A(f"v_add_u32 v{vD3}, {20*3072-3072}, v{vD0}")
    vD = (vD0, vD1, vD2, vD3)
    def diag_masks(m0, m1, val):
        A("v_lshrrev_b32 v12, 2, v10"); A("v_cmp_eq_u32 vcc, v12, v11")
        A("v_and_b32 v13, 1, v10"); A("v_lshlrev_b32 v13, 4, v13"); A(f"v_mov_b32 v12, {val}"); A("v_lshlrev_b32 v13, v13, v12")
        A("v_cndmask_b32 v13, 0, v13, vcc")
        A("v_and_b32 v12, 2, v10"); A("v_cmp_eq_u32 vcc, 0, v12"); A("s_nop 1")
        A(f"v_cndmask_b32 v{m0}, 0, v13, vcc"); A(f"v_sub_u32 v{m1}, v13, v{m0}")
    diag_masks(120, 121, '0xffff')
    A("v_lshrrev_b32 v12, 2, v10"); A("v_and_b32 v13, 3, v10"); A("v_lshl_add_u32 v12, v12, 3, v13"); A("v_lshlrev_b32 v12, 1, v12")
    A(f"v_mul_u32_u24 v13, {4*768}, v11"); A("v_add_u32 v12, v12, v13")
    A("v_and_b32 v13, 1, v11"); A(f"v_mul_u32_u24 v13, {16*768}, v13")
    A("v_add_u32 v15, v12, v13"); A(f"v_sub_u32 v13, {16*768}, v13"); A(f"v_add_u32 v{vLR}, v12, v13")
    vG0, vG1 = 15, vLR
    A(f"s_mul_i32 s{sHB}, s{sGW}, {48*4096}")
    A(f"s_and_b32 s{sAB}, s{sGW}, {NREP-1}"); A(f"s_mul_i32 s{sAB}, s{sAB}, 6144")
    A(f"s_mul_i32 s{sWW}, s3, {96*3072}"); A(f"s_mul_i32 s{sWL}, s3, 12288")
    A(f"s_lshr_b32 s{sT}, s2, 3"); A(f"s_mul_i32 s{sCH}, s{sT}, 3"); A(f"s_lshr_b32 s{sCH}, s{sCH}, 2")
    A(f"s_add_u32 s{sT}, s{sCH}, 23"); A(f"s_cmp_ge_u32 s{sT}, 24"); A(f"s_cselect_b32 s{sU}, 24, 0"); A(f"s_sub_u32 s{sT}, s{sT}, s{sU}")
    A(f"s_lshl_b32 s{sH1}, s{sT}, 13"); A(f"s_add_u32 s{sH1}, s{sH1}, s{sHB}"); A(f"s_add_u32 s{sH1}, s{sH1}, 4096")
    A(f"s_mov_b32 s{sAO}, 0")
    A(f"s_lshl_b32 s{sWS}, s{sCH}, 7")
    A("s_waitcnt vmcnt(48)")
    A(f"s_mov_b32 s{sD+2}, s{sV}"); A("v_mov_b32 v12, 1")
    A(f"buffer_atomic_add v12, v{vAT}, {S4(sD)}, 0 offen sc1")
    A(f"s_mov_b32 s{sD+2}, 256")
    after = 1
    for p in range(48): A(f"v_and_b32 v{16+p}, v{120+p%2}, v{16+p}")
    for p in range(48): A(f"v_accvgpr_write_b32 a{144+p}, v{16+p}")
    def adv_ws(): return [f"s_add_u32 s{sWS}, s{sWS}, 128", f"s_cmp_ge_u32 s{sWS}, 3072", f"s_cselect_b32 s{sWS}, 0, s{sWS}"]
    def dW1(i): return f"buffer_load_dwordx4 v{vD[i]}, {S4(sW)}, s{sWO} offen offset:{1024*i}{fg(opt.wld)} lds"
    def dma_chunk(slot):
        for q in range(3):
            A(f"s_add_u32 s{sWO}, s{sWS}, s{sWW}" if q == 0 else f"s_add_u32 s{sWO}, s{sWO}, {32*3072}")
            A(f"s_add_u32 m0, s{sWL}, {slot*CH + q*4096}")
            A("s_nop 0")
            for i in range(4): A(dW1(i))
        L.extend(adv_ws())
    def w2_gather(task, dst):
        if task == 0: A(f"s_mov_b32 s{sT}, s{sGW}")
        else:
            A(f"s_cmp_lt_u32 s{sGW}, 128"); A(f"s_cselect_b32 s{sT1+2}, s{sT1+2}, 0"); A(f"s_cselect_b32 s{sT}, s{sGW}, 0"); A(f"s_add_u32 s{sT}, s{sT}, 1024")
        A(f"s_mul_hi_u32 s{sU}, s{sT}, {hx(-(-(1<<32)//24))}")
        A(f"s_mul_i32 s{sV}, s{sU}, 24"); A(f"s_sub_u32 s{sT}, s{sT}, s{sV}")
        A(f"s_lshr_b32 s{sV}, s{sT}, 1"); A(f"s_and_b32 s{sT}, s{sT}, 1")
        A(f"s_lshl_b32 s{sV}, s{sV}, 6"); A(f"s_lshl_b32 s{sT}, s{sT}, 3"); A(f"s_add_u32 s{sT}, s{sT}, s{sV}")
        A(f"s_mul_i32 s{sU}, s{sU}, {32*768}"); A(f"s_add_u32 s{sT}, s{sT}, s{sU}")
        for jj in range(8): A(f"buffer_load_ushort v{dst+jj}, v{vG0 if jj < 4 else vG1}, {S4(sT1)}, s{sT} offen offset:{(jj%4)*768}")
    Y, SQ, GA = 16, 8, 112
    M16 = "v_mfma_f32_16x16x16_bf16"
    for t in range(4):
        for s in range(12):
            if s % 2 == 0: A(f"s_waitcnt vmcnt({48 - 12*t - s - 2 + after})")
            for v in range(2):
                A(f"{M16} {vq(SQ)}, {aq(144+4*s+2*v,2)}, {rq(raw[12*t+s],2*v,2)}, {vq(SQ) if s+v else 0}")
        if t < 2: dma_chunk(t); after += 12
        elif t == 2:
            srd(L, sT1, pW2, W_BYTES); w2_gather(0, GA); w2_gather(1, GA+8); after += 16
            A(f"buffer_load_dword v{vG0}, off, {S4(sD)}, 0 sc1"); after += 1
        else: A("s_nop 7")
        A(f"v_add_f32 v{SQ}, v{SQ}, v{SQ+1}"); A(f"v_add_f32 v{SQ+2}, v{SQ+2}, v{SQ+3}"); A(f"v_add_f32 v{SQ}, v{SQ}, v{SQ+2}")
        xgroup_sum(L, SQ, SQ+1)
        A(f"v_mul_f32 v{SQ}, {fl(-1/384)}, v{SQ}")
        for r in range(1, 4): A(f"v_mov_b32 v{SQ+r}, v{SQ}")
        A("s_nop 1")
        for s in range(12):
            for v in range(2):
                A(f"{M16} {vq(Y+8*s+4*v)}, {aq(144+4*s+2*v,2)}, {rq(raw[12*t+s],2*v,2)}, {vq(SQ)}")
        A("s_nop 2")
        for p in range(48):
            y = vq(Y+2*p, 2); a = vq(SQ+2*(p % 2), 2)
            A(f"v_pk_mul_f32 {a}, {y}, {y}" if p < 2 else f"v_pk_fma_f32 {a}, {y}, {y}, {a}")
        A(f"v_pk_add_f32 {vq(SQ,2)}, {vq(SQ,2)}, {vq(SQ+2,2)}"); A(f"v_add_f32 v{SQ}, v{SQ}, v{SQ+1}")
        xgroup_sum(L, SQ, SQ+1)
        A(f"v_mov_b32 v{SQ+2}, {fl(1e-5)}")
        A(f"v_fmac_f32 v{SQ+2}, {fl(1/384)}, v{SQ}")
        A(f"v_rsq_f32 v{SQ}, v{SQ+2}"); A("s_nop 0")
        A(f"v_mul_f32 v{SQ}, s{sC}, v{SQ}")
        for s in range(12):
            for q in range(4):
                y = Y+8*s+2*q; A(f"v_pk_mul_f32 {vq(y,2)}, {vq(y,2)}, {vq(SQ,2)} op_sel_hi:[1,0]")
            for q in range(4):
                y = Y+8*s+2*q; A(f"v_cvt_pk_bf16_f32 v{y}, v{y}, v{y+1}")
            for q in range(4):
                y = Y+8*s+2*q; A(f"v_accvgpr_write_b32 a{48*t+4*s+q}, v{y}")
    A("s_waitcnt vmcnt(0)")
    A("s_barrier")
    def wreg(sg, k): return WB + 4*(6*(sg % 2) + k) if k < 6 else WB + 48 + 4*(k-6)
    def wread(sg, k, rho): return f"ds_read_b64_tr_b16 {vq(wreg(sg,k)+2*rho,2)}, v{vLR} offset:{4096*k+1024*rho+256*sg}"
    srd(L, sT2, pWS, W_BYTES, W2P_OFF)
    for p in range(8): A(f"v_lshl_or_b32 v{16+p}, v{GA+2*p+1}, 16, v{GA+2*p}")
    A(f"v_lshlrev_b32 v24, 2, v{vAT}")
    A(f"v_mov_b32 v{vLR}, v{vLB}")
    A(f"s_lshl_b32 s{sT}, s{sGW}, 10")
    A(f"buffer_store_dwordx4 v[16:19], v24, {S4(sT2)}, s{sT} offen sc1")
    A(f"s_mov_b32 s{sT2+2}, s{sT1+2}"); A(f"s_and_b32 s{sT}, s{sT}, {hx(127 << 10)}"); A(f"s_add_u32 s{sT}, s{sT}, {1024 << 10}")
    A(f"buffer_store_dwordx4 v[20:23], v24, {S4(sT2)}, s{sT} offen sc1")
    for k in range(12):
        for rho in range(2): A(wread(0, k, rho))
        if k == 6: A("s_waitcnt lgkmcnt(4)")
    poll(L, 'a', sD, 0, NZ, vG0)
    A(f"s_mov_b32 s{sRD}, 0"); A(f"s_mov_b32 s{sM0}, {2*CH}"); A(f"s_mov_b32 s{sCNT}, 24")
    stamp(L, 1, 0)
    A("s_waitcnt lgkmcnt(0)")
    mf = []
    for n in range(16):
        sg, t = n // 4, n % 4
        for kk in range(12):
            k = kk if t % 2 == 0 else 11-kk
            d = vq(ACC+4*t)
            mf.append(f"v_mfma_f32_16x16x32_bf16 {d}, {aq(48*t+4*k)}, {vq(wreg(sg,k))}, {d if kk else 0}")
    G = Gaps(mf)
    for sg in range(4):
        nx = (sg+1) % 4
        for j in range(12): G.m[48*sg + 1 + 3*j].append(wread(nx, j//2, j % 2))
        for k in range(6, 12):
            for rho in range(2): G.m[48*sg + 37 + (11-k)].append(wread(nx, k, rho))
        G.s[48*sg+47].append("s_waitcnt lgkmcnt(0)")
    LAG = 2 if opt.gelu == 'add' else 3
    def group(n):
        sg, t = (n // 4) % 4, n % 4
        a = ACC+4*t; T = TMP+4*(n % 2); S = S0+sg; o = PK+4*t+2*(sg % 2)
        ops = []
        if opt.gelu == 'add':
            ops += [(f"v_fma_f32 v{T+i}, v{a+i}, v{a+i}, s{sKAP}", 1) for i in range(4)]
            ops += [(f"v_mul_f32 v{T+i}, v{a+i}, v{T+i}", 1) for i in range(4)]
            ops += [(f"v_exp_f32_e64 v{T+i}, -v{T+i}", 2) for i in range(4)]
            ops += [(f"v_add_f32 v{T+i}, 1.0, v{T+i}", 1) for i in range(4)]
            ops += [(f"v_rcp_f32 v{T+i}, v{T+i}", 2) for i in range(4)]
            ops += [(f"v_mul_f32 v{T+i}, v{a+i}, v{T+i}", 1) for i in range(4)]
        else:
            P2 = (0, 2)
            ops += [(f"v_cvt_pk_f16_f32 v{T+i}, v{a+i}, v{a+i+1}", 1) for i in P2]
            ops += [(f"v_pk_fma_f16 v{T+i+1}, v{T+i}, v{T+i}, s{sKAP}", 1) for i in P2]
            ops += [(f"v_pk_mul_f16 v{T+i}, v{T+i}, v{T+i+1} neg_lo:[1,0] neg_hi:[1,0]", 1) for i in P2]
            ops += [(f"v_exp_f16 v{T+i+1}, v{T+i}", 2) for i in P2]
            ops += [(f"v_exp_f16_sdwa v{T+i+1}, v{T+i} dst_sel:WORD_1 dst_unused:UNUSED_PRESERVE src0_sel:WORD_1", 2) for i in P2]
            ops += [(f"v_pk_add_f16 v{T+i}, v{T+i+1}, 1.0 op_sel_hi:[1,0]", 1) for i in P2]
            ops += [(f"v_rcp_f16_sdwa v{T+i+1}, v{T+i} dst_sel:DWORD dst_unused:UNUSED_PAD src0_sel:WORD_1", 2) for i in P2]
            ops += [(f"v_rcp_f16 v{T+i}, v{T+i}", 2) for i in P2]
            ops += [(f"v_fma_mix_f32 v{T+i}, v{a+i}, v{T+i}, 0 op_sel_hi:[0,1,0]", 1) for i in (1, 3, 0, 2)]
        q = lambda i: (f"v_mul_f32 v{S}, v{T+i}, v{T+i}", 1) if (t == 0 and i == 1) else (f"v_fmac_f32 v{S}, v{T+i}, v{T+i}", 1)
        ops += [q(1), (f"v_cvt_pk_bf16_f32 v{o}, v{T}, v{T+1}", 1), q(3), (f"v_cvt_pk_bf16_f32 v{o+1}, v{T+2}, v{T+3}", 1), q(0), q(2)]
        return ops
    reduce_ops = [(f"v_permlane32_swap_b32 v{S0}, v{S0+2}", 1), (f"v_permlane32_swap_b32 v{S0+1}, v{S0+3}", 1),
                  (f"v_add_f32 v{RT}, v{S0}, v{S0+2}", 1), (f"v_add_f32 v{RT+1}, v{S0+1}, v{S0+3}", 1),
                  (f"v_permlane16_swap_b32 v{RT}, v{RT+1}", 1), (f"v_add_f32 v{RT}, v{RT}, v{RT+1}", 1)]
    tail = []
    for n in range(16):
        ops = group(n)
        if n == 0:
            w = []; red = list(reduce_ops)
            for i, o in enumerate(ops):
                w.append(o)
                if i in (2, 5, 8, 10, 13, 16): w.append(red.pop(0))
            ops = w
        tot = sum(c for _, c in ops); cum = 0
        for ins, c in ops:
            g = 12*(n+1) + LAG + int(12*(cum + c/2)/tot)
            G.v[g % 192].append(ins); cum += c
            if g >= 192: tail.append(ins)
    st_tail = []
    for n in range(16):
        sg, t = n // 4, n % 4
        if sg % 2 == 1:
            g0 = 12*(n+2) + LAG + 1
            ins = f"buffer_store_dwordx4 {vq(PK+4*t)}, v{vHS}, {S4(sH)}, s{sH0 if sg == 1 else sH1} offen offset:{1024*t}{fg(opt.hst)}"
            G.m[G.next_free(g0)].append(ins)
            if g0 >= 192: st_tail.append(ins)
    at = f"buffer_atomic_add_f32 v{RT}, v{vAT}, {S4(sA)}, s{sAO} offen"
    gat = G.next_free(24 + LAG + 1); G.m[gat].append(at)
    for q in range(3):
        pre = [f"s_add_u32 s{sWO}, s{sWS}, s{sWW}", f"s_add_u32 m0, s{sM0}, s{sWL}"] if q == 0 else [f"s_add_u32 s{sWO}, s{sWO}, {32*3072}", "s_add_u32 m0, m0, 4096"]
        g = G.scal(48*q + 2, pre)
        for i, gg in enumerate((9, 21, 33, 44)):
            g = G.next_free(max(g, 48*q + gg)); G.m[g].append(dW1(i)); g += 1
        assert g <= 48*q + 47
    g = G.scal(gat+1, [f"s_lshl_b32 s{sH0}, s{sCH}, 13", f"s_add_u32 s{sH0}, s{sH0}, s{sHB}", f"s_add_u32 s{sH1}, s{sH0}, 4096",
                       f"s_lshl_b32 s{sAO}, s{sCH}, 8", f"s_add_u32 s{sAO}, s{sAO}, s{sAB}", f"s_mov_b32 s{sA+2}, {SUM_BYTES}"])
    assert g < 70
    g = G.scal(104, [f"s_add_u32 s{sRD}, s{sRD}, {CH}", f"s_cmp_ge_u32 s{sRD}, {3*CH}", f"s_cselect_b32 s{sRD}, 0, s{sRD}"])
    G.v[142].append(f"v_add_u32 v{vLR}, s{sRD}, v{vLB}")
    g = G.scal(146, adv_ws())
    g = G.scal(g, [f"s_add_u32 s{sM0}, s{sM0}, {CH}", f"s_cmp_ge_u32 s{sM0}, {3*CH}", f"s_cselect_b32 s{sM0}, 0, s{sM0}"])
    g = G.scal(g, [f"s_add_u32 s{sCH}, s{sCH}, 1", f"s_cmp_ge_u32 s{sCH}, 24", f"s_cselect_b32 s{sCH}, 0, s{sCH}"])
    g = G.scal(g, [f"s_sub_u32 s{sCNT}, s{sCNT}, 1", f"s_cmp_le_u32 s{sCNT}, 2", f"s_cselect_b32 s{sW+2}, 0, s{sW+2}", f"s_cmp_gt_u32 s{sCNT}, 1"])
    assert g < 190
    nvm = sum(1 for x in G.emit(0, 144) if I(x).vmem)
    G.s[143] = [f"s_waitcnt vmcnt({nvm}) lgkmcnt(0)", "s_barrier"]
    body1 = ablate(G.emit(), opt.abl1) + ["s_cbranch_scc1 L1_loop"]
    check_scc(body1)
    A(".p2align 6"); A("L1_loop:")
    trace = list(L) + body1 + body1
    L += body1
    mark = len(L)
    A(f"s_cmp_eq_u32 s{sCNT}, 0"); A("s_cbranch_scc1 L1_done")
    code_prefetch(L, vD1, shift=6)
    A("s_branch L1_loop")
    A("L1_done:")
    A("s_nop 5")
    L += tail
    A("s_nop 1")
    for ins, _ in reduce_ops: L += [ins, "s_nop 1"]
    L += st_tail + [at]
    stamp(L, 2, 1)
    vL16, vWR, vH0, vH1, vSB, vX = 1, 2, 3, 4, 5, 6
    NW = 6
    WF, HS, SC, BC, TM3 = 8, 32, 64, 72, 80
    sO, sG, sB = sX, sT1, sT2
    sHO, sHL, sWN = sH0, sH1, sAO
    WCH = 24576; L_H = 3*WCH; L_SB = L_H + 65536; L_RED = L_SB + 12288; LDS = L_RED + 256
    A("v_and_b32 v9, 63, v0"); A("v_and_b32 v10, 15, v0"); A("v_bfe_u32 v11, v0, 4, 2")
    A("v_lshlrev_b32 v110, 3, v0"); A("v_lshlrev_b32 v111, 2, v0"); A("v_lshlrev_b32 v109, 2, v9")
    srd(L, sG, pG, 3072); srd(L, sB, pB, 3072)
    A(f"s_cmp_eq_u32 s3, 0"); A(f"s_cselect_b32 s{sD+2}, 132, 0")
    A("v_mov_b32 v108, 1")
    A("s_waitcnt vmcnt(0)"); A("s_barrier")
    A(f"buffer_atomic_add v108, v109, {S4(sD)}, 0 offen offset:128 sc1")
    for i in range(3):
        A(f"buffer_load_dword v{112+i}, v111, {S4(sG)}, 0 offen offset:{1024*i}")
        A(f"buffer_load_dword v{115+i}, v111, {S4(sB)}, 0 offen offset:{1024*i}")
    A(f"v_lshlrev_b32 v{vL16}, 4, v9")
    A(f"s_mov_b32 s{sHO}, s{sHB}")
    A(f"s_lshl_b32 s{sHL}, s3, 14"); A(f"s_add_u32 s{sHL}, s{sHL}, {L_H}")
    def dmaH(slot):
        return ([f"s_add_u32 m0, s{sHL}, {4096*slot}"],
                [f"buffer_load_dwordx4 v{vL16}, {S4(sH)}, s{sHO} offen offset:{1024*i}{fg(opt.hld)} lds" for i in range(4)],
                [f"s_add_u32 s{sHO}, s{sHO}, 4096"])
    for slot in range(4):
        a, b, c = dmaH(slot); L.extend(a + ["s_nop 0"] + b + c)
    diag_masks(120, 121, '0x3f80')
    A(f"v_mul_u32_u24 v{vX}, 768, v10"); A(f"v_lshl_add_u32 v{vX}, v11, 4, v{vX}")
    A(f"v_lshlrev_b32 v{vSB}, 5, v11"); A(f"v_add_u32 v{vSB}, {L_SB}, v{vSB}")
    A("v_and_b32 v12, 1, v11"); A("v_lshlrev_b32 v12, 3, v12")
    A(f"v_add3_u32 v{vH0}, v{vL16}, s{sHL}, v12"); A(f"v_xor_b32 v{vH1}, 8, v{vH0}")
    A(f"v_mov_b32 v{vWR}, v{vL16}")
    for r in range(4): A(f"v_mov_b32 v{104+r}, v{128+r}")
    A("s_nop 1")
    src = list(raw); src[0] = ('v', 104)
    free = [('a', 4*q) for q in range(48)] + [raw[0]]
    accloc = {}
    for f in list(range(47, 0, -1)) + [0]:
        t, P = f // 12, f % 12
        for v in range(2):
            d = free.pop(0); accloc[(2*P+v, t)] = d
            A(f"{M16} {rq(d)}, v[120:121], {rq(src[f],2*v,2)}, 0")
        if f: free.append(raw[f])
    assert not free and len(set(accloc.values())) == 96
    def acc(T, t): return rq(accloc[(T, t)])
    srd(L, sW, pWS, W_BYTES, W2P_OFF); srd(L, sO, pO, X_BYTES)
    A(f"s_mul_i32 s{sWW}, s3, 6144"); A(f"s_mov_b32 s{sWO}, s{sWW}")
    A("v_lshrrev_b32 v10, 4, v0"); A("v_lshlrev_b32 v10, 8, v10")
    A("v_bfe_u32 v11, v0, 1, 2"); A("v_lshl_add_u32 v10, v11, 5, v10")
    A("v_lshrrev_b32 v12, 3, v0"); A("v_xor_b32 v12, v12, v11"); A("v_and_b32 v12, 1, v12"); A("v_lshl_add_u32 v10, v12, 4, v10")
    A("v_and_b32 v12, 1, v0"); A("v_lshl_add_u32 v10, v12, 3, v10"); A(f"v_add_u32 v10, {L_SB}, v10")
    A("s_waitcnt vmcnt(16)")
    for i in range(3):
        A(f"v_lshlrev_b32 v{16+2*i}, 16, v{115+i}"); A(f"v_and_b32 v{17+2*i}, s{sMSK}, v{115+i}")
        A(f"v_lshlrev_b32 v{24+2*i}, 16, v{112+i}"); A(f"v_and_b32 v{25+2*i}, s{sMSK}, v{112+i}")
    for i in range(3): A(f"ds_write_b64 v10, {vq(16+2*i,2)} offset:{4096*i+128}")
    A("s_cmp_lg_u32 s3, 0"); A("s_cbranch_scc1 Lw_b_ok")
    A("v_mov_b32 v108, 0"); A("s_nop 0")
    poll(L, 'b', sD, 128, 256, 108)
    A("s_barrier")
    stamp(L, 3)
    P0 = 40
    for i in range(3):
        for r in range(NREP):
            A(f"s_mov_b32 s{sT}, {r*6144 + i*2048}")
            A(f"buffer_load_dwordx2 {vq(P0+2*(i*NREP+r),2)}, v110, {S4(sA)}, s{sT} offen sc1")
    def dW(i): return f"buffer_load_dwordx4 v{vL16}, {S4(sW)}, s{sWO} offen offset:{1024*i}{fg(opt.wld)} lds"
    for slot in range(2):
        A(f"s_add_u32 m0, s{sWW}, {slot*WCH}"); A("s_nop 0")
        for i in range(3): A(dW(i))
        A(f"s_add_u32 s{sWO}, s{sWO}, 3072"); A("s_add_u32 m0, m0, 3072"); A("s_nop 0")
        for i in range(3): A(dW(i))
        A(f"s_add_u32 s{sWO}, s{sWO}, {WCH-3072}")
    A(f"s_add_u32 m0, s{sWW}, {2*WCH}"); A("s_nop 0"); A(dW(0)); A(dW(1))
    A("s_waitcnt vmcnt(14)")
    for i in range(3):
        b = P0 + 2*i*NREP; st = 1
        while st < NREP:
            for r in range(0, NREP, 2*st): A(f"v_pk_add_f32 {vq(b+2*r,2)}, {vq(b+2*r,2)}, {vq(b+2*(r+st),2)}")
            st *= 2
    GX = [P0, P0+1, P0+2*NREP, P0+2*NREP+1, P0+4*NREP, P0+4*NREP+1]
    A(f"s_mov_b32 s{sT}, {fl(1/c_in()**2)}"); A(f"v_mov_b32 v8, {fl(1e-6)}")
    for r in GX: A(f"v_fma_f32 v{r}, v{r}, s{sT}, v8")
    for r in GX: A(f"v_sqrt_f32 v{r}, v{r}")
    A("s_nop 0")
    A(f"v_add_f32 v8, v{GX[0]}, v{GX[1]}")
    for r in GX[2:]: A(f"v_add_f32 v8, v8, v{r}")
    for sh in (8, 4, 2, 1):
        A("s_nop 1"); A(f"v_add_f32_dpp v8, v8, v8 row_ror:{sh} row_mask:0xf bank_mask:0xf")
    xgroup_sum(L, 8, 9)
    A(f"s_lshl_b32 s{sT}, s3, 2"); A(f"s_add_u32 s{sT}, s{sT}, {L_RED}"); A(f"v_mov_b32 v9, s{sT}")
    A("ds_write_b32 v9, v8")
    A(f"v_mov_b32 v9, {L_RED}")
    for j in range(6): A(f"v_mul_f32 v{24+j}, v{24+j}, v{GX[j]}")
    A("s_waitcnt lgkmcnt(0)"); A("s_barrier")
    A("ds_read_b128 v[12:15], v9")
    def h_reads(slot, hs):
        o = []
        for t in range(4):
            o.append(f"ds_read_b64_tr_b16 {vq(hs+4*t,2)}, v{vH0} offset:{4096*slot+1024*t}")
            o.append(f"ds_read_b64_tr_b16 {vq(hs+4*t+2,2)}, v{vH1} offset:{4096*slot+1024*t}")
        return o
    def sb_reads(off):
        return [f"ds_read_b128 {vq(SC)}, v{vSB} offset:{off}", f"ds_read_b128 {vq(BC)}, v{vSB} offset:{off+128}",
                f"ds_read_b128 {vq(SC+4)}, v{vSB} offset:{off+16}", f"ds_read_b128 {vq(BC+4)}, v{vSB} offset:{off+144}"]
    def scale_ops(hs):
        o = []
        for pp in range(8):
            r0, r1 = hs+2*pp, hs+2*pp+1; c = 4*(pp % 2); T = TM3 + 4*(pp % 2)
            o += [f"v_lshlrev_b32 v{T}, 16, v{r0}", f"v_and_b32 v{T+1}, s{sMSK}, v{r0}", f"v_lshlrev_b32 v{T+2}, 16, v{r1}", f"v_and_b32 v{T+3}, s{sMSK}, v{r1}"]
            o += [f"v_fma_f32 v{T+i}, v{T+i}, v{SC+c+i}, v{BC+c+i}" for i in range(4)]
            o += [f"v_cvt_pk_bf16_f32 v{r0}, v{T}, v{T+1}", f"v_cvt_pk_bf16_f32 v{r1}, v{T+2}, v{T+3}"]
        return o
    L.extend(h_reads(0, HS))
    A("s_waitcnt lgkmcnt(8)")
    A("v_add_f32 v12, v12, v13"); A("v_add_f32 v14, v14, v15"); A("v_add_f32 v12, v12, v14")
    A(f"v_mov_b32 v13, {fl(1e-6*c_in())}"); A(f"v_fmac_f32 v13, {fl(c_in()/1536)}, v12"); A("v_rcp_f32 v13, v13")
    A(f"v_mov_b32 v14, {fl(1/c_in())}")
    for j in range(6): A(f"v_fma_f32 v{24+j}, v{24+j}, v13, v14")
    for i in range(3): A(f"ds_write_b64 v10, {vq(24+2*i,2)} offset:{4096*i}")
    A(f"s_mov_b32 s{sRD}, 0"); A(f"s_mov_b32 s{sCNT}, 12"); A(f"s_mov_b32 s{sWN}, {W_BYTES}")
    A("s_waitcnt vmcnt(2) lgkmcnt(0)"); A("s_barrier")
    L.extend(sb_reads(0))
    for F in range(NW-1): A(f"ds_read_b128 {vq(WF+4*F)}, v{vWR} offset:{1024*F}")
    A(f"s_waitcnt lgkmcnt({NW-1})")
    L.extend(scale_ops(HS))
    stamp(L, 4, 2)
    A("s_waitcnt lgkmcnt(0)")
    mf = []
    for st in range(4):
        for T in range(24):
            for t in (range(4) if T % 2 == 0 else range(3, -1, -1)):
                mf.append(f"v_mfma_f32_16x16x32_bf16 {acc(T,t)}, {vq(WF+4*(T%NW))}, {vq(HS+16*(st%2)+4*t)}, {acc(T,t)}")
    G = Gaps(mf)
    BAR = 80
    late = {24: BAR+1, 25: BAR+3, 26: BAR+5, 27: 88, 28: 92}
    for st in range(4):
        b = 96*st
        for F in range(5, 29):
            G.m[b+late.get(F, 4*(F-5))].append(f"ds_read_b128 {vq(WF+4*(F%NW))}, v{vWR} offset:{1024*(F%24)}")
        G.s[b+BAR] = ["WAITBAR", "s_barrier"]
        for F in range(1, 25): G.s[b+4*F-1].append("WAITL")
        G.m[b+2].append(dW(2))
        G.s[b+5].append(f"s_add_u32 s{sWO}, s{sWO}, 3072"); G.s[b+9].append("s_add_u32 m0, m0, 3072")
        for i, gg in enumerate((13, 22, 33)): G.m[b+gg].append(dW(i))
        a, dm, c = dmaH(st)
        G.s[b+37] += a; G.s[b+38].append(f"s_add_u32 s{sWO}, s{sWO}, {WCH-3072}")
        for d, gg in zip(dm, (42, 53, 62, 70)): G.m[b+gg].append(d)
        G.s[b+73] += c
        G.s[b+74].append(f"s_add_u32 m0, s{sRD}, s{sWW}")
        G.s[b+76].append(f"s_add_u32 s{sRD}, s{sRD}, {WCH}")
        G.s[b+77].append(f"s_cmp_ge_u32 s{sRD}, {3*WCH}")
        G.s[b+78].append(f"s_cselect_b32 s{sRD}, 0, s{sRD}")
        G.v[b+79].append(f"v_add_u32 v{vWR}, s{sRD}, v{vL16}")
        if st == 1: G.s[b+66].append(f"s_mov_b32 s{sW+2}, s{sWN}")
        for i, gg in enumerate((82, 90)): G.m[b+gg].append(dW(i))
        if st == 3:
            G.s[b+84].append(f"s_sub_u32 s{sCNT}, s{sCNT}, 1"); G.s[b+86].append(f"s_cmp_gt_u32 s{sCNT}, 1")
        nx = st+1
        rd = sb_reads(256*nx) + h_reads(nx % 4, HS+16*(nx % 2))
        g = b+1; rdg = []
        for r in rd:
            g = G.next_free(g); G.m[g].append(r); rdg.append(g)
        ops = scale_ops(HS+16*(nx % 2))
        g0 = rdg[4] + 6
        cap = []
        for g in range(g0, b+95):
            c = 2
            if G.m[g]: c = 1 if I(G.m[g][0]).ds else 0
            if g == b+BAR: c = 0
            c -= len(G.v[g])
            cap.append(max(c, 0))
        assert sum(cap) >= len(ops), (sum(cap), len(ops))
        tot = sum(cap); k = 0; cum = 0
        for g, c in zip(range(g0, b+95), cap):
            cum += c
            while k < len(ops) and k < math.ceil(cum*len(ops)/tot):
                assert g >= rdg[4 + k//10] + 6
                G.v[g].append(ops[k]); k += 1
        assert k == len(ops)
    G.v[96*3+60].append(f"v_add_u32 v{vSB}, 1024, v{vSB}")
    body3 = resolve_waits(G.emit(), lambda q: S4(sW) in q.text, 6)
    body3 = ablate(body3, opt.abl3) + ["s_cbranch_scc1 L3_loop"]
    check_scc(body3)
    A(".p2align 6"); A("L3_loop:")
    trace += L[mark:] + body3 + body3
    L += body3
    mark = len(L)
    A(f"s_cmp_eq_u32 s{sCNT}, 0"); A("s_cbranch_scc1 L3_done")
    A(f"s_mov_b32 s{sH+2}, 0"); A(f"s_mov_b32 s{sWN}, 0")
    code_prefetch(L, 104, shift=5)
    A("s_branch L3_loop")
    A("L3_done:")
    stamp(L, 5, 3)
    A("s_waitcnt lgkmcnt(0)")
    A("s_nop 5")
    k = 0
    for t in range(4):
        A(f"s_add_u32 s{sT}, s{sXB}, {12288*t}")
        for P in range(12):
            o = 8 + 12*(k % 8); k += 1
            sr = []
            for v in range(2):
                c, r0 = accloc[(2*P+v, t)]
                if c == 'a':
                    for r in range(4): A(f"v_accvgpr_read_b32 v{o+4+4*v+r}, a{r0+r}")
                    sr.append(o+4+4*v)
                else: sr.append(r0)
            for v in range(2):
                for r in range(2): A(f"v_cvt_pk_bf16_f32 v{o+2*v+r}, v{sr[v]+2*r}, v{sr[v]+2*r+1}")
            A(f"buffer_store_dwordx4 {vq(o)}, v{vX}, {S4(sO)}, s{sT} offen offset:{64*P}{fg(opt.ost)}")
    if opt.stamps:
        stamp(L, 6); A("s_waitcnt vmcnt(0)"); stamp(L, 7)
        A("s_waitcnt lgkmcnt(0)")
        srd(L, sT1, pWS, 1 << 20, STAMP_OFF)
        A(f"s_sub_u32 s{ST0+16}, s{ST0+18}, s{ST0+16}"); A(f"s_sub_u32 s{ST0+18}, s{ST0+22}, s{ST0+20}")
        for i in range(10): A(f"v_mov_b32 v{8+i}, s{ST0+2*i}")
        A("v_mov_b32 v7, 0"); A(f"s_lshl_b32 s{sT}, s{sGW}, 6")
        for i in range(3): A(f"buffer_store_dwordx4 {vq(8+4*i)}, v7, {S4(sT1)}, s{sT} offen offset:{16*i}")
        if opt.dbgst:
            A("s_nop 1")
            for i in range(1, 8): A(f"v_sub_u32 v{8+i}, v{8+i}, v8")
            A(f"s_cmp_eq_u32 s{sGW}, 0"); A(f"s_cselect_b32 s{sD+2}, 64, 0")
            for i in range(3): A(f"buffer_store_dwordx4 {vq(8+4*i)}, v7, {S4(sD)}, 0 offen offset:{16+16*i}")
    trace += L[mark:]
    A("L_end:")
    A("s_endpgm")
    errs = check_hazards(trace, 'k')
    return L, max(LDS, 3*CH), errs

def build():
    body, lds, errs = kernel()
    for x in errs: print(x, file=sys.stderr)
    assert not errs or opt.abl1 or opt.abl3
    n = NAME + '_kernel'
    out = [open('header.txt').read().rstrip()]
    out.append(f"; @launch grid=(256,1,1) block=(256,1,1) lds={lds}")
    out.append('.amdgcn_target "amdgcn-amd-amdhsa--gfx950"'); out.append('.text')
    out += [f".globl {n}", ".p2align 8", f".type {n},@function", f"{n}:"]
    out += [x if x.endswith(':') or x.startswith('.') else '    ' + x for x in body]
    out.append('.fill 2048, 4, 0xbf800000')
    out.append('.section .rodata,"a"')
    out += [".p2align 6", f".amdhsa_kernel {n}", "  .amdhsa_next_free_vgpr 512", "  .amdhsa_next_free_sgpr 102",
            "  .amdhsa_accum_offset 256", "  .amdhsa_group_segment_fixed_size 0", "  .amdhsa_kernarg_size 72",
            "  .amdhsa_user_sgpr_count 2", "  .amdhsa_user_sgpr_kernarg_segment_ptr 1", "  .amdhsa_system_sgpr_workgroup_id_x 1",
            "  .amdhsa_float_denorm_mode_32 3", ".end_amdhsa_kernel"]
    return "\n".join(out) + "\n"

if __name__ == '__main__':
    outp = sys.argv[1]
    for kv in sys.argv[2:]:
        k, v = kv.split('=')
        assert hasattr(opt, k), k
        setattr(opt, k, v if isinstance(getattr(opt, k), str) else eval(v))
    open(outp, 'w').write(build())
```
